```python
import torch

def _softmax(x, axis=-1):
    return torch.softmax(x, dim=axis)

def _gelu(x):
    return torch.nn.functional.gelu(x, approximate='tanh')

def _silu(x):
    return torch.nn.functional.silu(x)

def _sigmoid(x):
    return torch.sigmoid(x)

def _layernorm(x, axis=-1, eps=1e-05):
    m = x.mean(dim=axis, keepdim=True)
    v = x.var(dim=axis, keepdim=True, unbiased=False)
    return (x - m) / torch.sqrt(v + eps)

def _scatter_add(tgt, idx, src, axis=0):
    return tgt.clone().index_add_(axis, idx, src)

def _segment_sum(src, seg, n):
    out = torch.zeros((n,) + src.shape[1:], dtype=src.dtype)
    return out.index_add_(0, seg, src)

def _pad(x, pw):
    flat = tuple((v for pair in reversed(pw) for v in pair))
    return torch.nn.functional.pad(x, flat)
kernel_name = 'parallel_sum__softmax_full_mha__mixer_gmlp__prompt'

def setup_inputs():

    _w = lambda a: (lambda t: t.to(torch.bfloat16) if t.is_floating_point() else t)(torch.as_tensor(a))

    def _A_setup():
        B, S, D = (1, 2048, 448)
        return {'x': _w((lambda *s: torch.randn(*s, dtype=torch.bfloat16) * 0.05)(B, S, D)), 'wqkv': _w((lambda *s: torch.randn(*s, dtype=torch.bfloat16) * 0.2)(D, 3 * D)), 'wo': _w((lambda *s: torch.randn(*s, dtype=torch.bfloat16) * 0.1)(D, D))}
    _A_in = _A_setup()

    def _B_setup():
        B, S, D, F = (1, 2048, 448, 1792)
        Fh = F // 2
        return {'x': _w((lambda *s: torch.randn(*s, dtype=torch.bfloat16) * 0.05)(B, S, D)), 'w_in': _w((lambda *s: torch.randn(*s, dtype=torch.bfloat16) * 0.4)(D, 2 * Fh)), 'w_sp': _w(0.01 * (lambda *s: torch.randn(*s, dtype=torch.bfloat16) * 0.4)(S, S)), 'b_sp': _w(1.0 + 0.01 * (lambda *s: torch.randn(*s, dtype=torch.bfloat16) * 0.2)(S)), 'w_out': _w((lambda *s: torch.randn(*s, dtype=torch.bfloat16) * 0.2)(Fh, D))}
    _B_in = _B_setup()
    return {'A_x': _A_in['x'], 'A_wqkv': _A_in['wqkv'], 'A_wo': _A_in['wo'], 'B_x': _B_in['x'], 'B_w_in': _B_in['w_in'], 'B_w_sp': _B_in['w_sp'], 'B_b_sp': _B_in['b_sp'], 'B_w_out': _B_in['w_out']}

def reference(A_x, A_wqkv, A_wo, B_x, B_w_in, B_w_sp, B_b_sp, B_w_out):

    def _A_ref(x, wqkv, wo):
        B, S, D = x.shape
        H = 16
        Dh = D // H
        qkv = (lambda x, *d: x.permute(*d))((x @ wqkv).reshape(B, S, 3, H, Dh), 2, 0, 3, 1, 4)
        q, k, v = (qkv[0], qkv[1], qkv[2])
        scale = Dh ** (-0.5)
        scores = torch.einsum('bhqd,bhkd->bhqk', q, k) * scale
        p = _softmax(scores, axis=-1)
        o = torch.einsum('bhqk,bhkd->bhqd', p, v)
        return (lambda x, *d: x.permute(*d))(o, 0, 2, 1, 3).reshape(B, S, D) @ wo

    def _B_ref(x, w_in, w_sp, b_sp, w_out):
        B, S, D = x.shape
        F = w_in.shape[-1]
        Fh = F // 2
        z = _gelu(torch.einsum('bsd,df->bsf', x, w_in))
        z1 = z[..., :Fh].clone()
        z2 = _layernorm(z[..., Fh:], axis=-1)
        g = torch.einsum('ts,bsf->btf', w_sp, z2) + b_sp[None, :, None]
        return torch.einsum('bsf,fd->bsd', z1 * g, w_out)
    x = A_x
    xn = _layernorm(x, axis=-1)
    return x + _A_ref(xn, A_wqkv, A_wo) + _B_ref(xn, B_w_in, B_w_sp, B_b_sp, B_w_out)
```

```python
import re

TRANS = ("v_exp_f32", "v_log_f32", "v_rcp_f32", "v_rsq_f32", "v_sqrt_f32", "v_sin_f32", "v_cos_f32",
         "v_rcp_iflag_f32")
REG_RE = re.compile(r"^(-|\|)?(?:abs\()?([vas])(\d+|\[(\d+):(\d+)\])\)?\|?$")
VCC = {("s", 106), ("s", 107)}
EXEC = {("s", 126), ("s", 127)}
M0 = {("s", 124)}
SCC = {("scc", 0)}


def regs_of(tok):
    tok = tok.strip()
    if tok == "vcc":
        return set(VCC)
    if tok == "vcc_lo":
        return {("s", 106)}
    if tok == "vcc_hi":
        return {("s", 107)}
    if tok == "exec":
        return set(EXEC)
    if tok == "exec_lo":
        return {("s", 126)}
    if tok == "exec_hi":
        return {("s", 127)}
    if tok == "m0":
        return set(M0)
    m = REG_RE.match(tok)
    if not m:
        return set()
    f = m.group(2)
    if m.group(4) is not None:
        return {(f, i) for i in range(int(m.group(4)), int(m.group(5)) + 1)}
    return {(f, int(m.group(3)))}


class Ins:
    __slots__ = ("text", "op", "dst", "src", "kind", "tag", "pre_nops", "pre_vm", "pre_lgkm",
                 "srcC", "srcAB", "passes", "wtag", "keep", "wide", "nopn", "sdata", "comment")

    def __init__(self, text, tag=None):
        self.text = text
        self.tag = tag
        self.pre_nops = 0
        self.pre_vm = None
        self.pre_lgkm = None
        self.srcC = set()
        self.srcAB = set()
        self.passes = 0
        self.wtag = None
        self.keep = 0
        self.wide = False
        self.nopn = 0
        self.sdata = set()
        self.parse()

    def parse(self):
        t = self.text.split(";")[0].strip()
        self.dst, self.src, self.kind = set(), set(), "other"
        if not t or t.endswith(":") or t.startswith("."):
            self.op = ""
            self.kind = "label"
            return
        parts = t.split(None, 1)
        op = self.op = parts[0]
        rest = parts[1] if len(parts) > 1 else ""
        toks = [x.strip() for x in rest.split(",")] if rest else []
        mods = []
        if toks:
            last = toks[-1].split()
            toks[-1] = last[0] if last else ""
            mods = last[1:]
        R = [regs_of(x) for x in toks]
        allr = set().union(*R) if R else set()
        if op.startswith("v_mfma"):
            self.kind = "mfma"
            self.dst = R[0]
            self.srcAB = R[1] | R[2]
            self.srcC = R[3]
            self.src = self.srcAB | self.srcC
            self.passes = 8 if "32x32x16" in op else 4
        elif op.startswith("v_"):
            base = op.replace("_e32", "").replace("_e64", "").replace("_dpp", "")
            self.kind = "trans" if base in TRANS else "valu"
            if base.startswith("v_cmpx"):
                raise ValueError("no cmpx")
            if base.startswith("v_permlane") or base.startswith("v_swap"):
                self.dst = R[0] | R[1]
                self.src = R[0] | R[1]
            elif base in ("v_add_co_u32", "v_sub_co_u32", "v_addc_co_u32", "v_subb_co_u32", "v_mad_u64_u32"):
                self.dst = R[0] | R[1]
                self.src = set().union(*R[2:])
            else:
                self.dst = R[0]
                self.src = set().union(*R[1:]) if len(R) > 1 else set()
                if base in ("v_fmac_f32", "v_dot2c_f32_bf16", "v_writelane_b32"):
                    self.src |= R[0]
            self.src |= EXEC
        elif op.startswith("ds_"):
            self.kind = "ds"
            if op.startswith("ds_read") or op.startswith("ds_bpermute") or op.startswith("ds_permute") or op.startswith("ds_swizzle") or "_rtn" in op:
                self.dst = R[0]
                self.src = set().union(*R[1:])
            else:
                self.src = allr
            self.src |= EXEC
        elif op.startswith("buffer_") or op.startswith("global_"):
            self.kind = "vmem"
            if "load" in op:
                if "lds" in mods or "_lds_" in op:
                    self.src = allr | M0
                    self.kind = "vmem"
                else:
                    self.dst = R[0]
                    self.src = set().union(*R[1:])
            elif "atomic" in op:
                self.src = allr
                if "sc0" in mods:
                    self.dst = R[0] if op.startswith("buffer_") else R[0]
                if "cmpswap_x2" in op:
                    self.wide = True
                    self.sdata = R[0]
            elif "store" in op:
                self.src = allr
                if "x4" in op or "x3" in op:
                    self.wide = True
                    self.sdata = R[0] if op.startswith("buffer_") else R[1]
            else:
                self.src = allr
            self.src |= EXEC
        elif op.startswith("s_"):
            self.kind = "salu"
            if op in ("s_waitcnt", "s_barrier", "s_endpgm", "s_setprio", "s_sleep", "s_branch"):
                self.kind = "other"
            elif op == "s_nop":
                self.kind = "nop"
                self.nopn = int(toks[0], 0)
            elif op.startswith("s_load") or op.startswith("s_buffer_load") or op in ("s_memtime", "s_memrealtime"):
                self.kind = "smem"
                self.dst = R[0]
                self.src = set().union(*R[1:]) if len(R) > 1 else set()
            elif op.startswith("s_cmp") or op.startswith("s_bitcmp"):
                self.dst = set(SCC)
                self.src = allr
            elif op.startswith("s_cbranch"):
                self.kind = "other"
                if "scc" in op:
                    self.src = set(SCC)
                elif "vcc" in op:
                    self.src = set(VCC)
                else:
                    self.src = set(EXEC)
            elif "saveexec" in op:
                self.dst = R[0] | EXEC | SCC
                self.src = R[1] | EXEC
            else:
                self.dst = R[0] | SCC
                self.src = set().union(*R[1:]) if len(R) > 1 else set()
                if op.startswith("s_cselect") or op in ("s_addc_u32", "s_subb_u32"):
                    self.src |= SCC
                if op in ("s_mov_b32", "s_mov_b64", "s_movk_i32", "s_cselect_b32", "s_cselect_b64", "s_mul_i32", "s_mul_hi_u32", "s_getreg_b32"):
                    self.dst = R[0]
                if op in ("s_addk_i32", "s_mulk_i32"):
                    self.src |= R[0]
        else:
            raise ValueError("unknown instr: " + self.text)


class Seg:
    def __init__(self, name):
        self.name = name
        self.ins = []

    def __call__(self, text, tag=None):
        for line in text.strip().split("\n"):
            line = line.strip()
            if not line:
                continue
            i = Ins(line, tag)
            self.ins.append(i)
        return self.ins[-1]

    def add(self, ins):
        self.ins.append(ins)

    def extend(self, lst):
        self.ins.extend(lst)

    def wait_tag(self, tag, keep=0):
        i = Ins("s_nop 0")
        i.kind = "waittag"
        i.wtag = tag
        i.keep = keep
        i.text = None
        self.ins.append(i)
        return i

    def wait_lds_all(self):
        return self("s_waitcnt lgkmcnt(0)")


def mk(text, tag=None):
    return Ins(text, tag)


def mk_wait_tag(tag, keep=0):
    i = Ins("s_nop 0")
    i.kind = "waittag"
    i.wtag = tag
    i.keep = keep
    i.text = None
    return i


WAIT_RE = re.compile(r"(vmcnt|lgkmcnt)\((\d+)\)")


def analyse(trace):
    changed = False
    pos = 0
    lw_valu = {}
    lw_trans = {}
    lw_mfma = {}
    lr_mfmaC = {}
    lw_sgpr_valu = {}
    lw_m0 = -100
    wide_store = {}
    lw_exec_valu = -100
    vmq = []
    lgq = []
    for I in trace:
        if I.kind == "label":
            continue
        need_vm = None
        need_lg = None
        touched = I.src | I.dst
        if I.kind == "waittag":
            idx = [k for k, (d, tg) in enumerate(vmq) if tg == I.wtag]
            if len(idx) > I.keep:
                k = idx[len(idx) - 1 - I.keep]
                need_vm = len(vmq) - 1 - k
        else:
            for k in range(len(vmq) - 1, -1, -1):
                if vmq[k][0] & touched:
                    need_vm = len(vmq) - 1 - k
                    break
            for k in range(len(lgq) - 1, -1, -1):
                if lgq[k][0] & touched:
                    need_lg = len(lgq) - 1 - k
                    if any(x[1] for x in lgq):
                        need_lg = 0
                    break
        if need_vm is not None:
            need_vm = min(need_vm, 63)
            if I.pre_vm is None or need_vm < I.pre_vm:
                I.pre_vm = need_vm
                changed = True
        if need_lg is not None:
            need_lg = min(need_lg, 15)
            if I.pre_lgkm is None or need_lg < I.pre_lgkm:
                I.pre_lgkm = need_lg
                changed = True
        haswait = I.pre_vm is not None or I.pre_lgkm is not None
        if I.pre_vm is not None and len(vmq) > I.pre_vm:
            vmq = vmq[len(vmq) - I.pre_vm:] if I.pre_vm else []
        if I.pre_lgkm is not None and len(lgq) > I.pre_lgkm:
            lgq = lgq[len(lgq) - I.pre_lgkm:] if I.pre_lgkm else []
        if haswait:
            pos += 1
        if I.kind == "waittag":
            continue
        if I.op == "s_waitcnt":
            for c, n in WAIT_RE.findall(I.text):
                n = int(n)
                if c == "vmcnt" and len(vmq) > n:
                    vmq = vmq[len(vmq) - n:] if n else []
                if c == "lgkmcnt" and len(lgq) > n:
                    lgq = lgq[len(lgq) - n:] if n else []
        req = 0

        def need(p, ws):
            nonlocal req
            req = max(req, p + ws + 1)
        k = I.kind
        isvalu = k in ("valu", "trans")
        if k == "mfma":
            for r in I.src:
                if r in lw_valu:
                    need(lw_valu[r], 2)
            for r in I.srcAB:
                if r in lw_mfma:
                    p, ps, _ = lw_mfma[r]
                    need(p, 12 if ps == 8 else 8)
            for r in I.srcC:
                if r in lw_mfma:
                    p, ps, d = lw_mfma[r]
                    if d == I.srcC and ps == I.passes:
                        pass
                    else:
                        need(p, 10 if ps == 8 else 6)
            for r in I.dst:
                if r in lw_mfma and r not in I.srcC:
                    p, ps, d = lw_mfma[r]
                    need(p, 12 if ps == 8 else 8)
        if isvalu or k in ("vmem", "ds"):
            for r in (I.src | I.dst):
                if r in lw_mfma:
                    p, ps, _ = lw_mfma[r]
                    need(p, 12 if ps == 8 else 8)
        if isvalu:
            for r in I.dst:
                if r in lr_mfmaC:
                    p, ps = lr_mfmaC[r]
                    need(p, 7 if ps == 8 else 3)
                if r in wide_store:
                    need(wide_store[r], 2)
            for r in I.src:
                if k != "trans" and r in lw_trans:
                    need(lw_trans[r], 1)
                if r[0] == "s" and r in lw_sgpr_valu and r not in EXEC:
                    need(lw_sgpr_valu[r], 4 if ("readlane" in I.op or "writelane" in I.op) else 2)
            if I.op.startswith("v_readfirstlane") or I.op.startswith("v_readlane"):
                for r in I.src:
                    if r in lw_valu:
                        need(lw_valu[r], 1)
            if I.op.startswith("v_permlane") or "dpp" in I.text or "row_" in I.text or "quad_perm" in I.text:
                for r in I.src:
                    if r in lw_valu:
                        need(lw_valu[r], 2)
        if k in ("vmem", "ds"):
            for r in I.dst:
                if r in wide_store:
                    need(wide_store[r], 1)
            for r in I.src:
                if r in lw_trans:
                    need(lw_trans[r], 1)
        if k == "vmem":
            for r in I.src:
                if r[0] == "s" and r in lw_sgpr_valu:
                    need(lw_sgpr_valu[r], 5)
            if M0 & I.src:
                need(lw_m0, 1)
        if k == "salu" or k == "other":
            for r in I.src:
                if r in lw_sgpr_valu:
                    need(lw_sgpr_valu[r], 1)
        cur = pos + I.pre_nops
        if req > cur:
            I.pre_nops += req - cur
            changed = True
            cur = req
        pos = cur
        if k == "mfma":
            for r in I.dst:
                lw_mfma[r] = (pos, I.passes, I.dst)
                lw_valu.pop(r, None)
                lw_trans.pop(r, None)
            for r in I.srcC:
                lr_mfmaC[r] = (pos, I.passes)
        elif isvalu:
            for r in I.dst:
                if r[0] == "s":
                    lw_sgpr_valu[r] = pos
                else:
                    lw_valu[r] = pos
                    lw_mfma.pop(r, None)
                    if k == "trans":
                        lw_trans[r] = pos
                    else:
                        lw_trans.pop(r, None)
        elif k == "salu":
            if M0 & I.dst:
                lw_m0 = pos
            for r in I.dst:
                lw_sgpr_valu.pop(r, None)
        if k == "vmem":
            vmq.append((I.dst, I.tag))
            if I.wide:
                for r in I.sdata:
                    wide_store[r] = pos
            for r in I.dst:
                lw_mfma.pop(r, None); lw_valu.pop(r, None); lw_trans.pop(r, None)
        elif k == "ds":
            lgq.append((I.dst, False))
            for r in I.dst:
                lw_mfma.pop(r, None); lw_valu.pop(r, None); lw_trans.pop(r, None)
        elif k == "smem":
            lgq.append((I.dst, True))
            if len(I.dst) > 1:
                lgq.append((I.dst, True))
        pos += 1 + (I.nopn if k == "nop" else 0)
    return changed


class Kernel:
    def __init__(self, name):
        self.name = name
        self.segs = {}
        self.order = []
        self.traces = []

    def seg(self, name):
        s = Seg(name)
        self.segs[name] = s
        self.order.append(name)
        return s

    def trace(self, names):
        self.traces.append(list(names))

    def emit(self):
        if not self.traces:
            self.traces = [list(self.order)]
        for it in range(50):
            ch = False
            for tr in self.traces:
                lst = []
                for n in tr:
                    lst += self.segs[n].ins
                ch |= analyse(lst)
            if not ch:
                break
        else:
            raise RuntimeError("analysis did not converge")
        out = []
        for n in self.order:
            for I in self.segs[n].ins:
                w = []
                if I.pre_vm is not None:
                    w.append(f"vmcnt({I.pre_vm})")
                if I.pre_lgkm is not None:
                    w.append(f"lgkmcnt({I.pre_lgkm})")
                if w:
                    out.append("    s_waitcnt " + " ".join(w))
                n_ = I.pre_nops
                while n_ > 0:
                    c = min(n_, 16)
                    out.append(f"    s_nop {c-1}")
                    n_ -= c
                if I.text is not None:
                    out.append(I.text if I.kind == "label" else "    " + I.text)
        return "\n".join(out)


def kernel_text(name, body, vgpr, sgpr=102, accum=None, agpr=0):
    if accum is None:
        accum = (vgpr + 3) // 4 * 4
    nfv = accum + agpr if agpr else vgpr
    return f""".text
.globl {name}
.p2align 8
.type {name},@function
{name}:
{body}
.section .rodata,"a"
.p2align 6
.amdhsa_kernel {name}
  .amdhsa_next_free_vgpr {nfv}
  .amdhsa_next_free_sgpr {sgpr}
  .amdhsa_accum_offset {accum}
  .amdhsa_group_segment_fixed_size 0
  .amdhsa_kernarg_size 88
  .amdhsa_user_sgpr_count 2
  .amdhsa_user_sgpr_kernarg_segment_ptr 1
  .amdhsa_system_sgpr_workgroup_id_x 1
.end_amdhsa_kernel
"""


def interleave(main, filler, cost_main=None, cost_fill=None):
    slots = [i for i, I in enumerate(main) if I.kind == "mfma"]
    if not slots:
        return main + filler
    out = []
    nf = len(filler)
    ns = len(slots)
    done = 0
    si = 0
    for i, I in enumerate(main):
        out.append(I)
        if I.kind == "mfma":
            si += 1
            upto = (nf * si) // ns
            out += filler[done:upto]
            done = upto
    out += filler[done:]
    return out
```

```python
from asmfw import *

MB = 1 << 20
WS_QF = 0
WS_KV = 2 * MB
WS_Z1 = 6 * MB
WS_Z2N = 10 * MB
WS_ACT = 14 * MB
WS_STATS = 20 * MB
SZ_QF = 16 * 64 * 2048
SZ_KV = 16 * 64 * 4096
SZ_Z1 = 64 * 28 * 2048
SZ_Z2N = 28 * 128 * 1024
SZ_ACT = 64 * 88 * 1024
SZ_STATS = 16 * 7 * 128 * 16

KA_X, KA_WQKV, KA_WO, KA_BX, KA_WIN, KA_WSP, KA_BSP, KA_WOUT, KA_OUT, KA_DBG, KA_WS = [8 * i for i in range(11)]


def srd(s, d, p, nbytes, off=0):
    if off:
        s(f"s_add_u32 s{d}, s{p}, {off}")
        s(f"s_addc_u32 s{d+1}, s{p+1}, 0")
        s(f"s_and_b32 s{d+1}, s{d+1}, 0xffff")
    else:
        s(f"s_mov_b32 s{d}, s{p}")
        s(f"s_and_b32 s{d+1}, s{p+1}, 0xffff")
    s(f"s_mov_b32 s{d+2}, {nbytes}")
    s(f"s_mov_b32 s{d+3}, 0x20000")


def vr(a, n=1):
    return f"v{a}" if n == 1 else f"v[{a}:{a+n-1}]"


def ar(a, n=1):
    return f"a{a}" if n == 1 else f"a[{a}:{a+n-1}]"


import os
STAMP = bool(int(os.environ.get("STAMP", "0")))
WS_STAMP = 22 * MB


def stamp(seg, idx, base=72):
    if STAMP:
        seg(f"s_memtime s[{base+2*idx}:{base+2*idx+1}]")


def stamp_rt(seg, idx, base=72):
    if STAMP:
        seg(f"s_memrealtime s[{base+2*idx}:{base+2*idx+1}]")


def stamp_flush(seg, n, srd_reg, wave_sreg, wpb, vt, base=72):
    if not STAMP:
        return
    t = base + 2 * n
    seg("s_waitcnt lgkmcnt(0)")
    seg(f"s_mul_i32 s{t}, s2, {wpb}")
    seg(f"s_add_u32 s{t}, s{t}, s{wave_sreg}")
    seg(f"s_lshl_b32 s{t}, s{t}, 6")
    seg(f"s_add_u32 s{t}, s{t}, {WS_STAMP}")
    seg(f"v_mov_b32 v{vt+1}, 0")
    seg("s_mov_b64 exec, 1")
    for i in range(n):
        seg(f"v_mov_b32 v{vt}, s{base+2*i}")
        seg(f"buffer_store_dword v{vt}, v{vt+1}, s[{srd_reg}:{srd_reg+3}], s{t} offen offset:{4*i}")
    seg("s_mov_b64 exec, -1")
```

```python
from common import *

K1_LDS = 163840
XREG = 28672


def p1_base(st):
    return 114688 + st * 16384 if st < 3 else (st - 3) * 16384


def p2_base(st):
    return 65536 + st * 12288 if st < 4 else 114688 + (st - 4) * 12288


NONCE_LDS = 163824


def gen_k1():
    K = Kernel("k1_kernel")
    s = K.seg("pro")
    XF, ACCZ, ACCQ = 16, 128, 192
    V_L16, V_P1D, V_P2D, V_P1A, V_P2A = 1, 2, 3, 6, 10
    V_RSTD, V_NMR, V_C0, V_S0, V_S1 = 11, 12, 13, 14, 15
    T = 240
    s("s_cmp_ge_u32 s2, 224")
    s("s_cbranch_scc1 L_k1_end")
    s(f"s_load_dwordx4 s[4:7], s[0:1], {KA_X}")
    s(f"s_load_dwordx2 s[8:9], s[0:1], {KA_WIN}")
    s(f"s_load_dwordx4 s[12:15], s[0:1], {KA_DBG}")
    s("s_memrealtime s[10:11]")
    stamp(s, 0)
    s("v_lshrrev_b32 v1, 6, v0")
    s("v_and_b32 v0, 63, v0")
    s("v_readfirstlane_b32 s3, v1")
    s("s_bfe_u32 s48, s2, 0x20001")
    s("s_lshl_b32 s48, s48, 2")
    s("s_bfe_u32 s49, s2, 0x20003")
    s("s_add_u32 s48, s48, s49")
    s("s_lshr_b32 s50, s2, 5")
    s("s_and_b32 s51, s2, 1")
    s("s_mul_i32 s49, s51, 7")
    s("s_add_u32 s49, s49, s50")
    s("s_lshl_b32 s52, s48, 2")
    s("s_add_u32 s52, s52, s3")
    s(f"s_mul_i32 s53, s3, {XREG}")
    s(f"v_lshrrev_b32 v{T+2}, 3, v0")
    s(f"v_mul_u32_u24 v{T+2}, 896, v{T+2}")
    s(f"v_lshrrev_b32 v{T+3}, 4, v0")
    s(f"v_sub_u32 v{T}, v0, v{T+3}")
    s(f"v_and_b32 v{T}, 7, v{T}")
    s(f"v_xor_b32 v{T+1}, 4, v{T}")
    s(f"v_lshl_add_u32 v{T}, v{T}, 4, v{T+2}")
    s(f"v_lshl_add_u32 v{T+1}, v{T+1}, 4, v{T+2}")
    s(f"v_lshlrev_b32 v{T+4}, 2, v{T+3}")
    s(f"v_sub_u32 v{T+4}, v0, v{T+4}")
    s(f"v_and_b32 v{T+4}, 15, v{T+4}")
    s(f"v_mul_u32_u24 v{V_P1D}, 3584, v{T+3}")
    s(f"v_lshl_add_u32 v{V_P1D}, v{T+4}, 4, v{V_P1D}")
    s("s_waitcnt lgkmcnt(0)")
    srd(s, 16, 4, 2048 * 896)
    srd(s, 24, 8, 448 * 3584)
    s(f"s_mul_i32 s54, s52, {32*896}")
    for m in range(7):
        for rg in range(4):
            s(f"s_add_u32 s55, s54, {rg*8*896 + m*128}")
            s(f"s_add_u32 m0, s53, {m*4096 + rg*1024}")
            s(f"buffer_load_dwordx4 v{T+(rg&1)}, s[16:19], s55 offen lds", tag=f"x{m}")
    s("s_lshl_b32 s56, s49, 8")
    s(f"s_mul_i32 s57, s3, {16*3584}")
    s("s_add_u32 s56, s56, s57")
    s("s_lshl_b32 s57, s3, 12")

    def dma_p1(seg, st):
        for ii in range(4):
            seg(f"s_add_u32 s55, s56, {(64*st + 4*ii)*3584}")
            seg(f"s_add_u32 m0, s57, {p1_base(st) + ii*1024}")
            seg(f"buffer_load_dwordx4 v{V_P1D}, s[24:27], s55 offen lds", tag=f"p1_{st}")

    for st in range(3):
        dma_p1(s, st)
    srd(s, 20, 6, 448 * 2688)
    srd(s, 28, 14, 24 * MB)
    srd(s, 44, 12, 256)
    s("s_or_b32 s10, s10, 1")
    s(f"v_mov_b32 v{T+8}, s10")
    s(f"v_mov_b32 v{T+9}, 0")
    s("s_lshl_b32 s58, s48, 2")
    s(f"v_mov_b32 v{T+10}, s58")
    s("s_mul_i32 s59, s3, 2")
    s("s_sub_u32 s59, s51, s59")
    s("s_cmp_eq_u32 s59, 1")
    s("s_cbranch_scc0 L_k1_nononce")
    n = K.seg("nonce")
    n("s_mov_b64 exec, 1")
    n(f"buffer_atomic_cmpswap v[{T+8}:{T+9}], v{T+10}, s[44:47], 0 offen sc0")
    n("s_mov_b64 exec, -1")
    s = K.seg("pro2")
    s("L_k1_nononce:")
    s("s_mul_i32 s58, s3, 192")
    s("s_lshl_b32 s59, s49, 7")
    s("s_lshl_b32 s60, s49, 6")
    s("s_add_u32 s60, s60, 1664")
    s("s_mov_b32 s61, 43691")
    for ii in range(3):
        s(f"v_add_u32 v{T+2}, s58, v0")
        if ii:
            s(f"v_add_u32 v{T+2}, {64*ii}, v{T+2}")
        s(f"v_mul_lo_u32 v{T+3}, v{T+2}, s61")
        s(f"v_lshrrev_b32 v{T+3}, 19, v{T+3}")
        s(f"v_mad_i32_i24 v{T+4}, v{T+3}, -12, v{T+2}")
        s(f"v_mov_b32 v{T+5}, s59")
        s(f"v_mov_b32 v{T+6}, s60")
        s(f"v_cmp_gt_u32 vcc, 8, v{T+4}")
        s(f"v_cndmask_b32 v{T+5}, v{T+6}, v{T+5}, vcc")
        s(f"v_lshl_add_u32 v{T+5}, v{T+4}, 4, v{T+5}")
        s(f"v_mul_u32_u24 v{T+3}, 2688, v{T+3}")
        s(f"v_add_u32 v{V_P2D+ii}, v{T+3}, v{T+5}")
    s("s_mul_i32 s58, s3, 3072")

    def dma_p2(seg, st):
        seg(f"s_mov_b32 s55, {64*st*2688}")
        for ii in range(3):
            seg(f"s_add_u32 m0, s58, {p2_base(st) + ii*1024}")
            seg(f"buffer_load_dwordx4 v{V_P2D+ii}, s[20:23], s55 offen lds", tag=f"p2_{st}")

    s(f"v_bfe_u32 v{T+2}, v0, 2, 2")
    s(f"v_bfe_u32 v{T+3}, v0, 5, 1")
    s(f"v_lshl_add_u32 v{T+4}, v{T+3}, 3, v{T+2}")
    s(f"v_bfe_u32 v{T+5}, v0, 4, 1")
    s(f"v_bfe_u32 v{T+6}, v0, 1, 1")
    s(f"v_lshl_add_u32 v{T+6}, v{T+5}, 1, v{T+6}")
    s(f"v_lshl_add_u32 v{T+6}, v{T+2}, 2, v{T+6}")
    s(f"v_and_b32 v{T+7}, 1, v0")
    s(f"v_lshlrev_b32 v{T+7}, 3, v{T+7}")
    s(f"v_lshl_add_u32 v{T+7}, v{T+4}, 8, v{T+7}")
    s(f"v_add_u32 v{T+7}, 114688, v{T+7}")
    for j in range(4):
        s(f"v_add_u32 v{T+11}, {4*j}, v{T+6}")
        s(f"v_and_b32 v{T+11}, 15, v{T+11}")
        s(f"v_lshl_add_u32 v{V_P1A+j}, v{T+11}, 4, v{T+7}")
    s(f"v_mul_u32_u24 v{V_P2A}, 192, v{T+4}")
    s(f"v_lshl_add_u32 v{V_P2A}, v{T+5}, 5, v{V_P2A}")
    s(f"v_and_b32 v{T+7}, 3, v0")
    s(f"v_lshl_add_u32 v{V_P2A}, v{T+7}, 3, v{V_P2A}")
    s(f"v_add_u32 v{V_P2A}, 65536, v{V_P2A}")
    s(f"v_lshlrev_b32 v{V_L16}, 4, v0")
    s(f"v_and_b32 v{T+2}, 31, v0")
    s(f"v_lshrrev_b32 v{T+4}, 1, v{T+2}")
    s(f"v_add_u32 v{T+4}, v{T+4}, v{T+3}")
    s(f"v_lshlrev_b32 v{T+2}, 7, v{T+2}")
    s(f"v_add_u32 v{T+2}, s53, v{T+2}")
    for q in range(4):
        s(f"v_add_u32 v{T+11}, {2*q}, v{T+4}")
        s(f"v_and_b32 v{T+11}, 7, v{T+11}")
        s(f"v_lshl_add_u32 v{T+12+q}, v{T+11}, 4, v{T+2}")
    stamp(s, 1)
    s(f"v_mov_b32 v{T+2}, 0x3f803f80")
    for a in range(4):
        s(f"v_mov_b32 v{T+4+a}, 0")
    for m in range(7):
        s.wait_tag(f"x{m}")
        for q in range(4):
            s(f"ds_read_b128 {vr(XF+(4*m+q)*4,4)}, v{T+12+q} offset:{m*4096}")
        if m > 0:
            for r in range(16):
                x = XF + (m - 1) * 16 + r
                s(f"v_dot2_f32_bf16 v{T+4+(r&1)}, v{x}, v{T+2}, v{T+4+(r&1)}")
                s(f"v_dot2_f32_bf16 v{T+6+(r&1)}, v{x}, v{x}, v{T+6+(r&1)}")
    s("s_waitcnt lgkmcnt(0)")
    stamp(s, 2)
    s.wait_tag("p1_0")
    s("s_barrier")
    stamp(s, 3)
    for st in range(3, 7):
        dma_p1(s, st)
    for st in range(4):
        dma_p2(s, st)

    def trread1(k):
        st, ksl = divmod(k, 4)
        base = p1_base(st) - (114688 if st < 3 else 0)
        L = []
        for j in range(4):
            for e in range(2):
                L.append(mk(f"ds_read_b64_tr_b16 {ar((k&1)*16 + j*4 + e*2, 2)}, v{V_P1A+j} offset:{base + (16*ksl+4*e)*256}"))
        return L

    def trread2(k):
        st, ksl = divmod(k, 4)
        base = p2_base(st) - (65536 if st < 4 else 114688)
        L = []
        for j in range(3):
            for e in range(2):
                L.append(mk(f"ds_read_b64_tr_b16 {ar((k&1)*16 + j*4 + e*2, 2)}, v{V_P2A} offset:{base + j*64 + (16*ksl+4*e)*192}"))
        return L

    s.extend(trread1(0))
    for r in range(16):
        x = XF + 6 * 16 + r
        s(f"v_dot2_f32_bf16 v{T+4+(r&1)}, v{x}, v{T+2}, v{T+4+(r&1)}")
        s(f"v_dot2_f32_bf16 v{T+6+(r&1)}, v{x}, v{x}, v{T+6+(r&1)}")
    s("s_nop 2")
    s(f"v_add_f32 v{T+4}, v{T+4}, v{T+5}")
    s(f"v_add_f32 v{T+6}, v{T+6}, v{T+7}")
    s(f"v_mov_b32 v{T+5}, v{T+4}")
    s(f"v_mov_b32 v{T+7}, v{T+6}")
    s(f"v_permlane32_swap_b32 v{T+4}, v{T+5}")
    s(f"v_permlane32_swap_b32 v{T+6}, v{T+7}")
    s(f"v_add_f32 v{T+4}, v{T+4}, v{T+5}")
    s(f"v_add_f32 v{T+6}, v{T+6}, v{T+7}")
    s(f"v_mul_f32 v{T+4}, 0x3b124925, v{T+4}")
    s(f"v_mul_f32 v{T+6}, 0x3b124925, v{T+6}")
    s(f"v_fma_f32 v{T+6}, -v{T+4}, v{T+4}, v{T+6}")
    s(f"v_max_f32 v{T+6}, 0, v{T+6}")
    s(f"v_add_f32 v{T+6}, 0x3727c5ac, v{T+6}")
    s(f"v_rsq_f32 v{V_RSTD}, v{T+6}")
    s(f"v_mul_f32 v{V_NMR}, v{T+4}, v{V_RSTD}")
    s(f"v_sub_f32 v{V_NMR}, 0, v{V_NMR}")
    s(f"v_mov_b32 v{V_C0}, 0xc0135761")
    s(f"v_mov_b32 v{V_S0}, 0")
    s(f"v_mov_b32 v{V_S1}, 0")

    def norm(k):
        L = []
        for p in range(0, 4, 2):
            a, b = XF + k * 4 + p, XF + k * 4 + p + 1
            L += [mk(f"v_lshlrev_b32 v{T}, 16, v{a}"), mk(f"v_and_b32 v{T+1}, 0xffff0000, v{a}"),
                  mk(f"v_lshlrev_b32 v{T+2}, 16, v{b}"), mk(f"v_and_b32 v{T+3}, 0xffff0000, v{b}"),
                  mk(f"v_fma_f32 v{T}, v{T}, v{V_RSTD}, v{V_NMR}"), mk(f"v_fma_f32 v{T+1}, v{T+1}, v{V_RSTD}, v{V_NMR}"),
                  mk(f"v_fma_f32 v{T+2}, v{T+2}, v{V_RSTD}, v{V_NMR}"), mk(f"v_fma_f32 v{T+3}, v{T+3}, v{V_RSTD}, v{V_NMR}"),
                  mk(f"v_cvt_pk_bf16_f32 v{a}, v{T}, v{T+1}"), mk(f"v_cvt_pk_bf16_f32 v{b}, v{T+2}, v{T+3}")]
        return L

    s.extend(norm(0))
    s.extend(norm(1))
    stamp(s, 4)
    for k in range(28):
        pre = []
        if (k + 1) % 4 == 0:
            if k + 1 < 28:
                pre.append(mk_wait_tag(f"p1_{(k+1)//4}"))
            else:
                pre.append(mk_wait_tag("p2_0"))
            pre.append(mk("s_barrier"))
            if k == 11:
                for j in range(4):
                    pre.append(mk(f"v_subrev_u32 v{V_P1A+j}, 114688, v{V_P1A+j}"))
        s.extend(pre)
        if k == 15:
            for st in range(4, 7):
                dma_p2(s, st)
            s("s_cmp_lg_u32 s3, 0")
            s("s_cbranch_scc1 L_k1_nn2")
            n2 = K.seg("nonce2")
            n2(f"v_cmp_eq_u32 vcc, 0, v{T+8}")
            n2(f"v_mov_b32 v{T+9}, s10")
            n2(f"v_cndmask_b32 v{T+8}, v{T+8}, v{T+9}, vcc")
            n2(f"v_mov_b32 v{T+9}, {NONCE_LDS}")
            n2("s_mov_b64 exec, 1")
            n2(f"ds_write_b32 v{T+9}, v{T+8}")
            n2("s_mov_b64 exec, -1")
            s = K.seg("p1b")
            s("L_k1_nn2:")
        rd = trread1(k + 1) if k + 1 < 28 else trread2(0)
        main = []
        for j in range(4):
            acc = vr(ACCZ + 16 * j, 16)
            main.append(mk(f"v_mfma_f32_32x32x16_bf16 {acc}, {ar((k&1)*16 + j*4, 4)}, {vr(XF+k*4,4)}, {'0' if k == 0 else acc}"))
            main += rd[2 * j:2 * j + 2]
        fil = norm(k + 2) if k + 2 < 28 else []
        s.extend(interleave(main, fil))
    stamp(s, 5)
    gel = []
    for e0 in range(0, 64, 2):
        z0, z1 = ACCZ + e0, ACCZ + e0 + 1
        a, b = T + (e0 & 2), T + 1 + (e0 & 2)
        gel += [mk(f"v_mul_f32 v{a}, v{z0}, v{z0}"), mk(f"v_mul_f32 v{b}, v{z1}, v{z1}"),
                mk(f"v_fmamk_f32 v{a}, v{a}, 0xbdd2d3e8, v{V_C0}"), mk(f"v_fmamk_f32 v{b}, v{b}, 0xbdd2d3e8, v{V_C0}"),
                mk(f"v_mul_f32 v{a}, v{a}, v{z0}"), mk(f"v_mul_f32 v{b}, v{b}, v{z1}"),
                mk(f"v_exp_f32 v{a}, v{a}"), mk(f"v_exp_f32 v{b}, v{b}"),
                mk(f"v_add_f32 v{a}, 1.0, v{a}"), mk(f"v_add_f32 v{b}, 1.0, v{b}"),
                mk(f"v_rcp_f32 v{a}, v{a}"), mk(f"v_rcp_f32 v{b}, v{b}"),
                mk(f"v_mul_f32 v{z0}, v{z0}, v{a}"), mk(f"v_mul_f32 v{z1}, v{z1}, v{b}"),
                mk(f"v_add_f32 v{V_S0}, v{V_S0}, v{z0}"), mk(f"v_fmac_f32 v{V_S1}, v{z0}, v{z0}"),
                mk(f"v_add_f32 v{V_S0}, v{V_S0}, v{z1}"), mk(f"v_fmac_f32 v{V_S1}, v{z1}, v{z1}")]
    ng = len(gel)
    for k in range(28):
        if (k + 1) % 4 == 0 and k + 1 < 28:
            s.add(mk_wait_tag(f"p2_{(k+1)//4}"))
            s("s_barrier")
            if k == 15:
                s(f"v_add_u32 v{V_P2A}, 49152, v{V_P2A}")
        rd = trread2(k + 1) if k + 1 < 28 else []
        main = []
        for j in range(3):
            acc = vr(ACCQ + 16 * j, 16)
            w, x = ar((k & 1) * 16 + j * 4, 4), vr(XF + k * 4, 4)
            a, b = (w, x) if j < 2 else (x, w)
            main.append(mk(f"v_mfma_f32_32x32x16_bf16 {acc}, {a}, {b}, {'0' if k == 0 else acc}"))
            main += rd[2 * j:2 * j + 2]
        s.extend(interleave(main, gel[ng * k // 28: ng * (k + 1) // 28]))
    stamp(s, 6)
    U = 16
    s(f"v_mov_b32 v{U}, v{V_S0}")
    s(f"v_mov_b32 v{U+1}, v{V_S1}")
    s(f"v_permlane32_swap_b32 v{V_S0}, v{U}")
    s(f"v_permlane32_swap_b32 v{V_S1}, v{U+1}")
    s(f"v_add_f32 v{V_S0}, v{V_S0}, v{U}")
    s(f"v_add_f32 v{V_S1}, v{V_S1}, v{U+1}")
    s(f"v_and_b32 v{U+2}, 31, v0")
    s(f"v_lshrrev_b32 v{U+3}, 5, v0")
    s("s_cmp_eq_u32 s51, 0")
    s("s_cbranch_scc1 L_k1_typeA")
    b = K.seg("tB1")
    b(f"v_mov_b32 v{U+4}, {NONCE_LDS}")
    b(f"ds_read_b32 v{U+9}, v{U+4}")
    b("s_mul_i32 s55, s48, 7")
    b("s_lshl_b32 s59, s55, 11")
    b("s_lshl_b32 s60, s3, 9")
    b("s_add_u32 s59, s59, s60")
    b(f"s_add_u32 s59, s59, {WS_STATS}")
    b("s_lshl_b32 s60, s50, 11")
    b("s_add_u32 s60, s60, s59")
    b(f"v_lshlrev_b32 v{U+4}, 4, v{U+2}")
    b(f"v_mov_b32 v{U+8}, v{V_S0}")
    b(f"v_mov_b32 v{U+10}, v{V_S1}")
    b(f"v_mov_b32 v{U+11}, v{U+9}")
    b("s_mov_b32 exec_hi, 0")
    b(f"buffer_store_dwordx4 {vr(U+8,4)}, v{U+4}, s[28:31], s60 offen sc0 sc1")
    b("s_mov_b64 exec, -1")
    b(f"s_mov_b32 s62, 1.0")
    b(f"s_mov_b32 s63, 18")
    b(f"s_lshl_b32 s64, s52, 12")
    b(f"s_add_u32 s64, s64, {WS_KV}")
    b("s_branch L_k1_common")
    a = K.seg("tA1")
    a("L_k1_typeA:")
    a("s_mov_b32 s62, 0x3e8b97f6")
    a("s_mov_b32 s63, 17")
    a("s_lshl_b32 s64, s52, 11")
    a(f"s_add_u32 s64, s64, {WS_QF}") if WS_QF else None
    a("s_mul_i32 s55, s52, 56")
    a("s_lshl_b32 s59, s50, 3")
    a("s_add_u32 s55, s55, s59")
    a("s_lshl_b32 s55, s55, 10")
    a(f"s_add_u32 s55, s55, {WS_Z1}")
    a("s_add_u32 s59, s55, 4096")
    for j in range(4):
        P = 32 + j * 8
        for p in range(8):
            a(f"v_cvt_pk_bf16_f32 v{P+p}, v{ACCZ+16*j+2*p}, v{ACCZ+16*j+2*p+1}")
        so = "s55" if j < 2 else "s59"
        a(f"buffer_store_dwordx4 {vr(P,4)}, v{V_L16}, s[28:31], {so} offen offset:{(j&1)*2048}")
        a(f"buffer_store_dwordx4 {vr(P+4,4)}, v{V_L16}, s[28:31], {so} offen offset:{(j&1)*2048+1024}")
    c = K.seg("common")
    c("L_k1_common:")
    c("s_lshl_b32 s55, s50, 4")
    c(f"v_add_u32 v{U+5}, s55, v{U+3}")
    c(f"v_lshlrev_b32 v{U+4}, 4, v{U+2}")
    for jj in range(2):
        for rq in range(4):
            A = ACCQ + 16 * jj + 4 * rq
            P = 64 + (jj * 4 + rq) * 2
            W = 80 + ((jj * 4 + rq) & 1) * 4
            for i in range(4):
                c(f"v_mul_f32 v{A+i}, s62, v{A+i}")
            c(f"v_add_u32 v{W}, {8*jj+2*rq}, v{U+5}")
            c(f"v_mul_u32_u24 v{W+1}, 9363, v{W}")
            c(f"v_lshrrev_b32 v{W+1}, 16, v{W+1}")
            c(f"v_mad_i32_i24 v{W}, v{W+1}, -7, v{W}")
            c(f"v_lshlrev_b32 v{W+1}, s63, v{W+1}")
            c(f"v_add_u32 v{W+1}, v{W+1}, v{U+4}")
            c(f"v_and_b32 v{W+2}, 4, v{W}")
            c(f"v_lshl_add_u32 v{W+1}, v{W+2}, 8, v{W+1}")
            c(f"v_and_b32 v{W+2}, 1, v{W}")
            c(f"v_lshl_add_u32 v{W+1}, v{W+2}, 9, v{W+1}")
            c(f"v_and_b32 v{W+2}, 2, v{W}")
            c(f"v_lshl_add_u32 v{W+1}, v{W+2}, 2, v{W+1}")
            c(f"v_cvt_pk_bf16_f32 v{P}, v{A}, v{A+1}")
            c(f"v_cvt_pk_bf16_f32 v{P+1}, v{A+2}, v{A+3}")
            c(f"buffer_store_dwordx2 {vr(P,2)}, v{W+1}, s[28:31], s64 offen")
    c(f"s_lshl_b32 s65, s52, 12")
    c(f"s_add_u32 s65, s65, {WS_KV}")
    c("s_lshl_b32 s55, s49, 5")
    c(f"v_add_u32 v{U+6}, s55, v{U+2}")
    c(f"v_mul_u32_u24 v{U+7}, 2341, v{U+6}")
    c(f"v_lshrrev_b32 v{U+7}, 16, v{U+7}")
    c(f"s_mov_b32 s55, -28")
    c(f"v_mad_i32_i24 v{U+6}, v{U+7}, s55, v{U+6}")
    c(f"v_lshl_add_u32 v{U+6}, v{U+3}, 5, v{U+6}")
    c(f"v_lshlrev_b32 v{U+6}, 4, v{U+6}")
    c(f"v_lshl_add_u32 v{U+6}, v{U+7}, 18, v{U+6}")
    P = 88
    for p in range(8):
        c(f"v_cvt_pk_bf16_f32 v{P+p}, v{ACCQ+32+2*p}, v{ACCQ+32+2*p+1}")
    c(f"buffer_store_dwordx4 {vr(P,4)}, v{U+6}, s[28:31], s65 offen offset:2048")
    c(f"buffer_store_dwordx4 {vr(P+4,4)}, v{U+6}, s[28:31], s65 offen offset:3072")
    c("s_add_u32 s55, s49, 14")
    c("s_cmp_lt_u32 s49, 2")
    c("s_cselect_b32 s55, s55, s49")
    c("s_sub_u32 s55, s55, s49")
    c(f"v_mul_u32_u24 v{U+7}, s55, v{U+3}")
    c(f"v_add_u32 v{U+7}, s49, v{U+7}")
    c(f"v_lshlrev_b32 v{U+7}, 18, v{U+7}")
    c(f"v_add_u32 v{U+6}, v{U+7}, v{U+4}")
    c("v_mov_b32 v96, 0x3f803f80")
    c("v_mov_b32 v97, 0x3f80")
    c(f"buffer_store_dwordx2 v[96:97], v{U+6}, s[28:31], s65 offen offset:{1024+512+8}")
    c("v_and_b32 v98, 3, v0")
    c("v_bfe_u32 v99, v0, 2, 1")
    c("v_lshl_add_u32 v99, v99, 5, v98")
    c("v_lshlrev_b32 v99, 4, v99")
    c("v_bfe_u32 v100, v0, 3, 1")
    c("v_lshl_add_u32 v99, v100, 10, v99")
    c(f"v_add_u32 v99, v99, v{U+7}")
    c("v_cmp_eq_u32 vcc, 0, v98")
    c("v_cndmask_b32 v100, 0, v96, vcc")
    c("v_mov_b32 v101, v100")
    c("v_mov_b32 v102, v100")
    c("v_mov_b32 v103, v100")
    c(f"buffer_store_dwordx4 v[100:103], v99, s[28:31], s65 offen offset:{2048+28*16}")
    stamp(c, 7)
    stamp(c, 8)
    stamp(c, 9)
    c("s_cmp_eq_u32 s51, 0")
    c("s_cbranch_scc1 L_k1_fin")
    d = K.seg("tB2")
    d(f"v_lshlrev_b32 v{U+5}, 13, v{U+3}")
    d(f"v_add_u32 v{U+5}, v{U+5}, v{U+4}")
    d(f"v_mul_u32_u24 v{U+6}, 2048, v{U+3}")
    d(f"v_sub_u32 v{U+6}, v{U+5}, v{U+6}")
    d("s_add_u32 s60, s59, 4096")
    d("s_mov_b32 s61, 0")
    p = K.seg("poll")
    p("L_k1_poll:")
    G = 32
    p(f"buffer_load_dwordx4 {vr(G,4)}, v{U+5}, s[28:31], s59 offen sc0 sc1")
    p(f"buffer_load_dwordx4 {vr(G+4,4)}, v{U+5}, s[28:31], s59 offen offset:2048 sc0 sc1")
    p(f"buffer_load_dwordx4 {vr(G+8,4)}, v{U+5}, s[28:31], s60 offen sc0 sc1")
    p(f"buffer_load_dwordx4 {vr(G+12,4)}, v{U+6}, s[28:31], s60 offen offset:2048 sc0 sc1")
    p(f"v_xor_b32 v{G+16}, v{G+1}, v{U+9}")
    for i in (3, 5, 7, 9, 11, 13, 15):
        p(f"v_xor_b32 v{G+17}, v{G+i}, v{U+9}")
        p(f"v_or_b32 v{G+16}, v{G+16}, v{G+17}")
    p(f"v_cmp_ne_u32 vcc, 0, v{G+16}")
    p("s_add_u32 s61, s61, 1")
    p("s_cmp_eq_u64 vcc, 0")
    p("s_cbranch_scc1 L_k1_polled")
    p("s_sleep 1")
    p("s_cmp_lt_u32 s61, 0x40000")
    p("s_cbranch_scc1 L_k1_poll")
    e = K.seg("tB3")
    e("L_k1_polled:")
    stamp(e, 8)
    e(f"v_cmp_eq_u32 vcc, 0, v{U+3}")
    e(f"v_cndmask_b32 v{G+12}, 0, v{G+12}, vcc")
    e(f"v_cndmask_b32 v{G+14}, 0, v{G+14}, vcc")
    e(f"v_add_f32 v{G}, v{G}, v{G+4}")
    e(f"v_add_f32 v{G+8}, v{G+8}, v{G+12}")
    e(f"v_add_f32 v{G+2}, v{G+2}, v{G+6}")
    e(f"v_add_f32 v{G+10}, v{G+10}, v{G+14}")
    e(f"v_add_f32 v{G}, v{G}, v{G+8}")
    e(f"v_add_f32 v{G+2}, v{G+2}, v{G+10}")
    e(f"v_mov_b32 v{G+1}, v{G}")
    e(f"v_mov_b32 v{G+3}, v{G+2}")
    e(f"v_permlane32_swap_b32 v{G}, v{G+1}")
    e(f"v_permlane32_swap_b32 v{G+2}, v{G+3}")
    e(f"v_add_f32 v{G}, v{G}, v{G+1}")
    e(f"v_add_f32 v{G+2}, v{G+2}, v{G+3}")
    e(f"v_mul_f32 v{G}, 0x3a924925, v{G}")
    e(f"v_mul_f32 v{G+2}, 0x3a924925, v{G+2}")
    e(f"v_fma_f32 v{G+2}, -v{G}, v{G}, v{G+2}")
    e(f"v_max_f32 v{G+2}, 0, v{G+2}")
    e(f"v_add_f32 v{G+2}, 0x3727c5ac, v{G+2}")
    e(f"v_rsq_f32 v{V_RSTD}, v{G+2}")
    e(f"v_mul_f32 v{V_NMR}, v{G}, v{V_RSTD}")
    e(f"v_sub_f32 v{V_NMR}, 0, v{V_NMR}")
    e("s_mul_i32 s55, s3, 9216")
    e(f"v_mul_u32_u24 v{U+5}, 576, v{U+3}")
    e(f"v_add_u32 v{U+5}, v{U+5}, v{U+4}")
    e(f"v_add_u32 v{U+5}, s55, v{U+5}")
    e(f"v_bfe_u32 v{U+6}, v0, 4, 1")
    e(f"v_and_b32 v{U+7}, 1, v0")
    e(f"v_lshl_add_u32 v{U+6}, v{U+6}, 1, v{U+7}")
    e(f"v_mul_u32_u24 v{U+6}, 576, v{U+6}")
    e(f"v_bfe_u32 v{U+7}, v0, 2, 2")
    e(f"v_lshl_add_u32 v{U+7}, v{U+3}, 3, v{U+7}")
    e(f"v_lshl_add_u32 v{U+6}, v{U+7}, 4, v{U+6}")
    e(f"v_bfe_u32 v{U+7}, v0, 1, 1")
    e(f"v_lshl_add_u32 v{U+6}, v{U+7}, 3, v{U+6}")
    e(f"v_add_u32 v{U+6}, s55, v{U+6}")
    e("s_lshl_b32 s55, s50, 9")
    e("s_lshl_b32 s59, s52, 1")
    e("s_add_u32 s55, s55, s59")
    e("s_lshl_b32 s55, s55, 10")
    e(f"s_add_u32 s55, s55, {WS_Z2N}")
    for j in range(4):
        P = 48 + j * 8
        for i in range(16):
            z = ACCZ + 16 * j + i
            e(f"v_fma_f32 v{z}, v{z}, v{V_RSTD}, v{V_NMR}")
        for pp in range(8):
            e(f"v_cvt_pk_bf16_f32 v{P+pp}, v{ACCZ+16*j+2*pp}, v{ACCZ+16*j+2*pp+1}")
        e(f"ds_write_b128 v{U+5}, {vr(P,4)} offset:{j*2304}")
        e(f"ds_write_b128 v{U+5}, {vr(P+4,4)} offset:{j*2304+1152}")
        O = 80 + j * 8
        for ks2 in range(2):
            for ee in range(2):
                e(f"ds_read_b64_tr_b16 {vr(O+ks2*4+ee*2,2)}, v{U+6} offset:{j*2304 + (16*ks2+4*ee)*16}")
    for j in range(4):
        O = 80 + j * 8
        if j:
            e(f"s_add_u32 s55, s55, {128*1024}")
        e(f"buffer_store_dwordx4 {vr(O,4)}, v{V_L16}, s[28:31], s55 offen")
        e(f"buffer_store_dwordx4 {vr(O+4,4)}, v{V_L16}, s[28:31], s55 offen offset:1024")
    stamp(e, 9)
    z = K.seg("end")
    z("L_k1_fin:")
    stamp_flush(z, 10, 28, 3, 4, 2)
    z("L_k1_end:")
    z("s_endpgm")
    base = ["pro", "nonce", "pro2", "nonce2", "p1b"]
    base2 = ["pro", "pro2", "p1b"]
    for bb in (base, base2):
        K.trace(bb + ["tB1", "common", "tB2", "poll", "poll", "poll", "tB3", "end"])
        K.trace(bb + ["tB1", "common", "tB2", "poll", "tB3", "end"])
        K.trace(bb + ["tA1", "common", "end"])
    return kernel_text("k1_kernel", K.emit(), vgpr=256, sgpr=100, accum=256, agpr=32)


if __name__ == "__main__":
    print(gen_k1())
```

```python
from common import *

K2_LDS = 163840
DELTA = 64.0
import struct
f2u = lambda f: struct.unpack('<I', struct.pack('<f', f))[0]


def gen_k2():
    K = Kernel("k2_kernel")
    s = K.seg("pro")
    s("s_cmp_ge_u32 s2, 256")
    s("s_cbranch_scc1 L_k2_end")
    s(f"s_load_dwordx4 s[4:7], s[0:1], {KA_WSP}")
    s(f"s_load_dwordx2 s[8:9], s[0:1], {KA_WS}")
    stamp(s, 0)
    stamp_rt(s, 4)
    s("v_lshrrev_b32 v1, 6, v0")
    s("v_and_b32 v0, 63, v0")
    s("v_readfirstlane_b32 s3, v1")
    s("v_lshlrev_b32 v1, 4, v0")
    s("s_and_b32 s10, s2, 7")
    s("s_lshr_b32 s11, s2, 3")
    s("s_waitcnt lgkmcnt(0)")
    srd(s, 28, 8, 24 * MB)
    s("s_cmp_ge_u32 s3, 4")
    s("s_cbranch_scc1 L_k2_gemm")

    a = K.seg("a_pro")
    S = [16, 32]
    P, Q, C, T = 48, 56, 88, 92
    a("s_setprio 2")
    a("s_lshr_b32 s12, s11, 4")
    a("s_lshl_b32 s13, s10, 1")
    a("s_add_u32 s12, s12, s13")
    a("s_and_b32 s13, s11, 15")
    a("s_lshl_b32 s14, s12, 18")
    a("s_lshl_b32 s15, s3, 16")
    a("s_add_u32 s14, s14, s15")
    a(f"s_add_u32 s14, s14, {WS_KV}")
    a("s_add_u32 s32, s8, s14")
    a("s_addc_u32 s33, s9, 0")
    a("s_and_b32 s33, s33, 0xffff")
    a("s_mov_b32 s34, 65536")
    a("s_mov_b32 s35, 0x20000")

    def kvload(seg, buf, soff, imm_kt=0):
        for f in range(4):
            seg(f"buffer_load_dwordx4 {ar(64+buf*16+f*4,4)}, v1, s[32:35], {soff} offen offset:{f*1024}")

    kvload(a, 0, "0")
    a("s_lshl_b32 s14, s12, 17")
    a("s_lshl_b32 s15, s13, 13")
    a("s_add_u32 s14, s14, s15")
    for j in range(4):
        a(f"s_add_u32 s15, s3, {j}")
        a("s_and_b32 s15, s15, 3")
        a("s_lshl_b32 s15, s15, 11")
        a("s_add_u32 s15, s15, s14")
        a(f"buffer_load_dwordx4 {vr(Q+8*j,4)}, v1, s[28:31], s15 offen")
        a(f"buffer_load_dwordx4 {vr(Q+8*j+4,4)}, v1, s[28:31], s15 offen offset:1024")
    a("s_mov_b32 s16, 4096")
    a("s_mov_b32 s17, 8192")
    kvload(a, 1, "s16")
    kvload(a, 2, "s17")
    a("s_mov_b32 s18, 0")
    a("s_mov_b32 exec_lo, 0")
    for j in range(4):
        a(f"v_mov_b32 v{Q+8*j+6}, 0")
        a(f"v_mov_b32 v{Q+8*j+7}, 0")
    a("s_mov_b32 exec_lo, -1")

    def qk(dst, buf, j, half):
        c = "0" if half == 0 else vr(dst, 16)
        return mk(f"v_mfma_f32_32x32x16_bf16 {vr(dst,16)}, {ar(64+buf*16+half*4,4)}, {vr(Q+8*j+half*4,4)}, {c}")

    def tilemax(seg, src, dst, first):
        if first:
            seg(f"v_max3_f32 v{dst}, v{src}, v{src+1}, v{src+2}")
            seg(f"v_max_f32 v{dst}, v{dst}, v{src+3}")
        else:
            seg(f"v_max3_f32 v{dst}, v{dst}, v{src}, v{src+1}")
            seg(f"v_max3_f32 v{dst}, v{dst}, v{src+2}, v{src+3}")
        for i in range(4, 16, 2):
            seg(f"v_max3_f32 v{dst}, v{dst}, v{src+i}, v{src+i+1}")

    def setpads(seg, delta):
        for j in range(4):
            seg(f"v_mov_b32 v{T+j}, v{C+j}")
        for j in range(4):
            seg(f"v_permlane32_swap_b32 v{C+j}, v{T+j}")
        for j in range(4):
            seg(f"v_max_f32 v{C+j}, v{C+j}, v{T+j}")
            if delta:
                seg(f"v_add_f32 v{C+j}, {hex(f2u(delta))}, v{C+j}")
        for j in range(4):
            h, m, l, r = T + 4, T + 5, T + 6, T + 7
            seg(f"v_sub_f32 v{r}, 0, v{C+j}")
            seg(f"v_and_b32 v{h}, 0xffff0000, v{r}")
            seg(f"v_sub_f32 v{r}, v{r}, v{h}")
            seg(f"v_and_b32 v{m}, 0xffff0000, v{r}")
            seg(f"v_sub_f32 v{r}, v{r}, v{m}")
            seg(f"v_and_b32 v{l}, 0xffff0000, v{r}")
            seg(f"v_add_f32 v{r}, v{h}, v{m}")
            seg(f"v_add_f32 v{r}, v{r}, v{l}")
            seg(f"v_sub_f32 v{C+j}, 0, v{r}")
            seg("s_mov_b32 exec_lo, 0")
            seg(f"v_lshrrev_b32 v{h}, 16, v{h}")
            seg(f"v_or_b32 v{Q+8*j+6}, v{h}, v{m}")
            seg(f"v_lshrrev_b32 v{Q+8*j+7}, 16, v{l}")
            seg("s_mov_b32 exec_lo, -1")

    for j in range(4):
        d = S[j & 1]
        a.add(qk(d, 0, j, 0))
        a.add(qk(d, 0, j, 1))
        if j > 0:
            tilemax(a, S[(j - 1) & 1], C + j - 1, True)
    tilemax(a, S[1], C + 3, True)
    setpads(a, DELTA)
    m = K.seg("a_main")
    m("L_k2_amain:")
    stamp(m, 1)
    for r in range(64):
        m(f"v_accvgpr_write_b32 a{r}, 0")
    for r in range(4, 8):
        m(f"v_mov_b32 v{P+r}, 0")
        m(f"v_accvgpr_write_b32 a{120+r}, 0")
    m.add(qk(S[0], 0, 0, 0))
    m.add(qk(S[0], 0, 0, 1))
    m("s_mov_b32 s16, 12288")
    m("s_mov_b32 s19, 4")
    lp = K.seg("a_loop")
    lp("L_k2_aloop:")

    def pv(j, buf, half):
        o = ar(16 * j, 16)
        return mk(f"v_mfma_f32_32x32x16_bf16 {o}, {ar(64+buf*16+8+half*4,4)}, {vr(P+half*4,4)}, {o}")

    for u in range(16):
        kt, j = divmod(u, 4)
        cur, nxt = S[u & 1], S[(u + 1) & 1]
        kn, jn = divmod((u + 1) & 15, 4)
        kp, jp = divmod((u - 1) & 15, 4)
        ms = [qk(nxt, kn, jn, 0), pv(jp, kp, 1), qk(nxt, kn, jn, 1), pv(j, kt, 0)]
        for g in range(4):
            lp.add(ms[g])
            for i in range(4):
                lp(f"v_exp_f32 v{cur+4*g+i}, v{cur+4*g+i}")
            lp(f"v_cvt_pk_bf16_f32 v{P+2*g}, v{cur+4*g}, v{cur+4*g+1}")
            lp(f"v_cvt_pk_bf16_f32 v{P+2*g+1}, v{cur+4*g+2}, v{cur+4*g+3}")
        if j == 1:
            kvload(lp, (kt + 3) & 3, "s16")
            lp("s_add_u32 s16, s16, 4096")
    lp("s_sub_u32 s19, s19, 1")
    lp("s_cmp_lg_u32 s19, 0")
    lp("s_cbranch_scc1 L_k2_aloop")
    t = K.seg("a_post")
    t.add(pv(3, 3, 1))
    stamp(t, 2)
    L = T + 8
    for j in range(4):
        t(f"v_accvgpr_read_b32 v{L+j}, a{16*j+12}")
    for j in range(4):
        t(f"v_mov_b32 v{T+j}, v{L+j}")
    for j in range(4):
        t(f"v_permlane32_swap_b32 v{T+j}, v{L+j}")
    t(f"v_max3_f32 v{T}, v{L}, v{L+1}, v{L+2}")
    t(f"v_max_f32 v{T}, v{T}, v{L+3}")
    t(f"v_add_f32 v{T+1}, v{L}, v{L+1}")
    t(f"v_add_f32 v{T+2}, v{L+2}, v{L+3}")
    t(f"v_add_f32 v{T+1}, v{T+1}, v{T+2}")
    t(f"v_mov_b32 v{T+2}, {hex(f2u(2.0**90))}")
    t(f"v_cmp_nlt_f32 vcc, v{T+1}, v{T+2}")
    t("s_cmp_eq_u64 vcc, 0")
    t("s_cbranch_scc1 L_k2_aok")
    t("s_cmp_lg_u32 s18, 0")
    t("s_cbranch_scc1 L_k2_aok")
    fb = K.seg("a_fb")
    fb("s_mov_b32 s18, 1")
    fb("s_waitcnt vmcnt(0)")
    fb("s_mov_b32 exec_lo, 0")
    for j in range(4):
        fb(f"v_mov_b32 v{Q+8*j+6}, 0")
        fb(f"v_mov_b32 v{Q+8*j+7}, 0")
    fb("s_mov_b32 exec_lo, -1")
    for j in range(4):
        fb(f"v_mov_b32 v{C+j}, 0xff800000")
    fb("s_mov_b32 s16, 0")
    fl = K.seg("a_fbloop")
    fl("L_k2_fbloop:")
    kvload(fl, 3, "s16")
    for j in range(4):
        fl.add(qk(S[0], 3, j, 0))
        fl.add(qk(S[0], 3, j, 1))
        tilemax(fl, S[0], C + j, False)
    fl("s_add_u32 s16, s16, 4096")
    fl("s_cmp_lt_u32 s16, 65536")
    fl("s_cbranch_scc1 L_k2_fbloop")
    f2 = K.seg("a_fb2")
    setpads(f2, 0.0)
    f2("s_mov_b32 s16, 4096")
    f2("s_mov_b32 s17, 8192")
    kvload(f2, 0, "0")
    kvload(f2, 1, "s16")
    kvload(f2, 2, "s17")
    f2("s_branch L_k2_amain")
    c = K.seg("a_comb")
    c("L_k2_aok:")
    E = T + 12
    for j in range(4):
        c(f"v_log_f32 v{E+j}, v{L+j}")
        c(f"v_rcp_f32 v{L+j}, v{L+j}")
    for j in range(4):
        c(f"v_add_f32 v{E+j}, v{E+j}, v{C+j}")
    dsts = [16, 32, 56, 72]
    for j in range(4):
        for r in range(16):
            c(f"v_accvgpr_read_b32 v{dsts[j]+r}, a{16*j+r}")
        for r in range(16):
            c(f"v_mul_f32 v{dsts[j]+r}, v{dsts[j]+r}, v{L+j}")
    c("s_lshl_b32 s14, s3, 15")
    c("s_lshl_b32 s15, s3, 13")
    c(f"s_add_u32 s15, s15, 131072")
    c(f"v_add_u32 v2, s14, v1")
    c(f"v_add_u32 v3, s15, v1")
    c("v_lshlrev_b32 v4, 2, v0")
    c(f"v_add_u32 v4, s15, v4")
    c("s_barrier")
    for j in (1, 2):
        for g in range(4):
            c(f"ds_write_b128 v2, {vr(dsts[j]+4*g,4)} offset:{24576+(j-1)*4096+g*1024}")
    for g in range(4):
        c(f"ds_write_b128 v3, {vr(dsts[3]+4*g,4)} offset:{g*1024}")
    for j in range(1, 4):
        c(f"ds_write_b32 v4, v{E+j} offset:{4096+j*256}")
    c("s_waitcnt lgkmcnt(0)")
    c("s_barrier")
    rd = [None, 32, 56, 72]
    for j in range(1, 4):
        c(f"s_sub_u32 s14, s3, {j}")
        c("s_and_b32 s14, s14, 3")
        c("s_lshl_b32 s15, s14, 13")
        c("s_add_u32 s15, s15, 131072")
        c("s_lshl_b32 s14, s14, 15")
        if j < 3:
            c("v_add_u32 v2, s14, v1")
            for g in range(4):
                c(f"ds_read_b128 {vr(rd[j]+4*g,4)}, v2 offset:{24576+(j-1)*4096+g*1024}")
        else:
            c("v_add_u32 v2, s15, v1")
            for g in range(4):
                c(f"ds_read_b128 {vr(rd[j]+4*g,4)}, v2 offset:{g*1024}")
        c("v_lshlrev_b32 v4, 2, v0")
        c("v_add_u32 v4, s15, v4")
        c(f"ds_read_b32 v{E+j}, v4 offset:{4096+j*256}")
    c(f"v_max3_f32 v{T}, v{E}, v{E+1}, v{E+2}")
    c(f"v_max_f32 v{T}, v{T}, v{E+3}")
    for j in range(4):
        c(f"v_sub_f32 v{E+j}, v{E+j}, v{T}")
    for j in range(4):
        c(f"v_exp_f32 v{E+j}, v{E+j}")
    c(f"v_add_f32 v{T}, v{E}, v{E+1}")
    c(f"v_add_f32 v{T+1}, v{E+2}, v{E+3}")
    c(f"v_add_f32 v{T}, v{T}, v{T+1}")
    c(f"v_rcp_f32 v{T}, v{T}")
    for j in range(4):
        c(f"v_mul_f32 v{E+j}, v{E+j}, v{T}")
    for r in range(16):
        c(f"v_mul_f32 v{16+r}, v{16+r}, v{E}")
    for j in range(1, 4):
        for r in range(16):
            c(f"v_fmac_f32 v{16+r}, v{rd[j]+r}, v{E+j}")
    for p in range(8):
        c(f"v_cvt_pk_bf16_f32 v{P+p}, v{16+2*p}, v{16+2*p+1}")
    c("s_mov_b32 exec_lo, 0")
    c(f"v_mov_b32 v{P+6}, 0")
    c(f"v_mov_b32 v{P+7}, 0")
    c("s_mov_b32 exec_lo, -1")
    c("s_lshl_b32 s14, s13, 2")
    c("s_add_u32 s14, s14, s3")
    c("s_mul_i32 s14, s14, 88")
    c("s_lshl_b32 s15, s12, 1")
    c("s_add_u32 s14, s14, s15")
    c("s_lshl_b32 s14, s14, 10")
    c(f"s_add_u32 s14, s14, {WS_ACT}")
    c(f"buffer_store_dwordx4 {vr(P,4)}, v1, s[28:31], s14 offen")
    c(f"buffer_store_dwordx4 {vr(P+4,4)}, v1, s[28:31], s14 offen offset:1024")
    stamp(c, 3)
    c("s_branch L_k2_fin")

    g = K.seg("g_pro")
    g("L_k2_gemm:")
    g("s_cmp_ge_u32 s11, 28")
    g("s_cbranch_scc1 L_k2_end")
    g("s_setprio 3")
    g("s_sub_u32 s3, s3, 4")
    g("s_lshr_b32 s12, s10, 1")
    g("s_lshl_b32 s12, s12, 2")
    g("s_and_b32 s13, s11, 3")
    g("s_add_u32 s12, s12, s13")
    g("s_and_b32 s13, s10, 1")
    g("s_mul_i32 s13, s13, 7")
    g("s_lshr_b32 s14, s11, 2")
    g("s_add_u32 s13, s13, s14")
    g("s_lshl_b32 s14, s12, 19")
    g("s_lshl_b32 s15, s3, 10")
    g("s_add_u32 s14, s14, s15")
    g("s_add_u32 s20, s4, s14")
    g("s_addc_u32 s21, s5, 0")
    g("s_and_b32 s21, s21, 0xffff")
    g(f"s_sub_u32 s22, {2048*4096}, s14")
    g("s_mov_b32 s23, 0x20000")
    g("s_lshl_b32 s14, s3, 2")
    for i in range(16):
        g(f"s_add_u32 s15, s14, {i}")
        g("s_and_b32 s15, s15, 15")
        g(f"s_lshl_b32 s{36+i}, s15, 15")
    g("s_lshl_b32 s52, s3, 15")
    g("v_lshrrev_b32 v4, 3, v0")
    g("v_lshlrev_b32 v4, 12, v4")
    g("v_lshrrev_b32 v5, 4, v0")
    g("v_sub_u32 v2, v0, v5")
    g("v_and_b32 v2, 7, v2")
    g("v_xor_b32 v3, 4, v2")
    g("v_lshl_add_u32 v2, v2, 4, v4")
    g("v_lshl_add_u32 v3, v3, 4, v4")
    g("v_add_u32 v8, 128, v2")
    g("v_add_u32 v9, 128, v3")
    g("v_and_b32 v10, 31, v0")
    g("v_lshrrev_b32 v11, 1, v10")
    g("v_lshrrev_b32 v12, 5, v0")
    g("v_add_u32 v11, v11, v12")
    g("v_lshlrev_b32 v10, 7, v10")
    g("v_add_u32 v10, s52, v10")
    for q in range(4):
        g(f"v_add_u32 v12, {2*q}, v11")
        g("v_and_b32 v12, 7, v12")
        g(f"v_lshl_add_u32 v{4+q}, v12, 4, v10")
    g("s_lshl_b32 s53, s13, 18")
    g("s_lshl_b32 s14, s3, 15")
    g("s_add_u32 s53, s53, s14")
    g(f"s_add_u32 s53, s53, {WS_Z2N}")
    g(f"s_add_u32 s54, s53, {128*1024}")
    Z, W = 16, 80

    def dma_block(seg, par, j, odd):
        for ii in range(4):
            i = 4 * j + ii
            vo = (8 if odd else 2) + (i & 1)
            seg(f"s_add_u32 m0, s52, {(par*4+j)*4096 + ii*1024}")
            seg(f"buffer_load_dwordx4 v{vo}, s[20:23], s{36+i} offen lds", tag="wsp")

    def zload(seg, buf, ft, extra):
        for q in range(4):
            seg(f"buffer_load_dwordx4 {vr(Z+buf*32+ft*16+q*4,4)}, v1, s[28:31], s{53+ft} offen offset:{q*1024}")

    zload(g, 0, 0, 0)
    zload(g, 0, 1, 0)
    g("s_add_u32 s53, s53, 4096")
    g("s_add_u32 s54, s54, 4096")
    for j in range(4):
        dma_block(g, 0, j, False)
    for j in range(3):
        dma_block(g, 1, j, True)

    def wread(seg, par, j, wb):
        for q in range(4):
            seg(f"ds_read_b128 {vr(W+wb*16+q*4,4)}, v{4+q} offset:{(par*4+j)*4096}")

    g.wait_tag("wsp", keep=24)
    wread(g, 0, 0, 0)
    for r in range(4):
        g(f"v_mov_b32 v{112+r}, 0")
    for r in range(8):
        g(f"v_mfma_f32_32x32x16_bf16 {ar(16*r,16)}, v[112:115], v[112:115], 0")
    g("s_setprio 0")
    g("s_mov_b32 s19, 3")
    stamp(g, 1)

    def two_stages(seg, last):
        for b in range(8):
            par, j = b >> 2, b & 3
            wb = b & 1
            pb = (b - 1) & 7
            if not last or b == 0:
                if b == 1:
                    seg("s_add_u32 s20, s20, 256")
                    seg("s_addc_u32 s21, s21, 0")
                    seg("s_sub_u32 s22, s22, 256")
                dma_block(seg, pb >> 2, pb & 3, (pb >> 2) == 1)
            if j < 2 and not (last and par == 1):
                zload(seg, par ^ 1, j, 0)
                seg(f"s_add_u32 s{53+j}, s{53+j}, 4096")
            nb = b + 1
            if nb < 8 or not last:
                nb &= 7
                if last:
                    keep = max(0, (7 - nb) * 4) if b >= 0 else 0
                else:
                    keep = 24
                seg.wait_tag("wsp", keep=keep)
                wread(seg, nb >> 2, nb & 3, wb ^ 1)
            for q in range(4):
                for ft in range(2):
                    acc = ar((j * 2 + ft) * 16, 16)
                    seg(f"v_mfma_f32_32x32x16_bf16 {acc}, {vr(Z+par*32+ft*16+q*4,4)}, {vr(W+wb*16+q*4,4)}, {acc}")

    gl = K.seg("g_loop")
    gl("L_k2_gloop:")
    two_stages(gl, False)
    gl("s_sub_u32 s19, s19, 1")
    gl("s_cmp_lg_u32 s19, 0")
    gl("s_cbranch_scc1 L_k2_gloop")
    ge = K.seg("g_post")
    two_stages(ge, True)
    stamp(ge, 2)
    ge("s_lshl_b32 s14, s12, 2")
    ge("s_add_u32 s14, s14, s3")
    ge("s_mul_i32 s15, s14, 56")
    ge("s_lshl_b32 s16, s13, 2")
    ge("s_add_u32 s15, s15, s16")
    ge("s_lshl_b32 s15, s15, 10")
    ge(f"s_add_u32 s15, s15, {WS_Z1}")
    Z1R = 112
    for q in range(4):
        ge(f"buffer_load_dwordx4 {vr(Z1R+4*q,4)}, v1, s[28:31], s15 offen offset:{q*1024}")
    srd(ge, 24, 6, 4096)
    ge("v_and_b32 v10, 31, v0")
    ge("v_lshlrev_b32 v10, 1, v10")
    ge("s_lshl_b32 s17, s14, 6")
    ge("buffer_load_ushort v11, v10, s[24:27], s17 offen")
    ge("v_add_u32 v2, s52, v1")
    for qq in range(6):
        for gg in range(4):
            ge(f"ds_write_b128 v2, {ar(32+qq*16+gg*4,4)} offset:{qq*4096+gg*1024}")
    ge("s_waitcnt lgkmcnt(0)")
    ge("s_barrier")
    for j in range(1, 4):
        ge(f"s_sub_u32 s17, s3, {j}")
        ge("s_and_b32 s17, s17, 3")
        ge("s_lshl_b32 s17, s17, 15")
        ge("v_add_u32 v2, s17, v1")
        for gg in range(8):
            ge(f"ds_read_b128 {vr(16+(j-1)*32+gg*4,4)}, v2 offset:{(j-1)*8192+gg*1024}")
    ge("v_lshlrev_b32 v11, 16, v11")
    for r in range(32):
        ge(f"v_accvgpr_read_b32 v2, a{r}") if False else None
    for r in range(32):
        t0 = 2 + (r & 3)
        ge(f"v_accvgpr_read_b32 v{t0}, a{r}")
        ge(f"v_add_f32 v{16+r}, v{16+r}, v{48+r}")
        ge(f"v_add_f32 v{t0}, v{t0}, v11")
        ge(f"v_add_f32 v{16+r}, v{16+r}, v{80+r}")
        ge(f"v_add_f32 v{16+r}, v{16+r}, v{t0}")
    for p in range(16):
        t0 = 2 + 2 * (p & 1)
        ge(f"v_lshlrev_b32 v{t0}, 16, v{Z1R+p}")
        ge(f"v_and_b32 v{t0+1}, 0xffff0000, v{Z1R+p}")
        ge(f"v_mul_f32 v{16+2*p}, v{16+2*p}, v{t0}")
        ge(f"v_mul_f32 v{17+2*p}, v{17+2*p}, v{t0+1}")
        ge(f"v_cvt_pk_bf16_f32 v{48+p}, v{16+2*p}, v{17+2*p}")
    ge("s_mul_i32 s15, s14, 88")
    ge("s_add_u32 s15, s15, s16")
    ge("s_add_u32 s15, s15, 32")
    ge("s_lshl_b32 s15, s15, 10")
    ge(f"s_add_u32 s15, s15, {WS_ACT}")
    for q in range(4):
        ge(f"buffer_store_dwordx4 {vr(48+4*q,4)}, v1, s[28:31], s15 offen offset:{q*1024}")
    stamp(ge, 3)
    ge("s_add_u32 s3, s3, 4")
    z = K.seg("end")
    z("L_k2_fin:")
    stamp_rt(z, 5)
    stamp_flush(z, 6, 28, 3, 8, 2)
    z("L_k2_end:")
    z("s_endpgm")
    A0 = ["pro", "a_pro", "a_main", "a_loop", "a_loop", "a_loop", "a_post"]
    K.trace(A0 + ["a_comb", "end"])
    K.trace(A0 + ["a_fb", "a_fbloop", "a_fbloop", "a_fb2", "a_main", "a_loop", "a_loop", "a_post", "a_comb", "end"])
    K.trace(["pro", "g_pro", "g_loop", "g_loop", "g_loop", "g_post", "end"])
    return kernel_text("k2_kernel", K.emit(), vgpr=128, sgpr=100, accum=128, agpr=128)


if __name__ == "__main__":
    print(gen_k2())
```

```python
from common import *

K3_LDS = 4 * 14 * 2048


def gen_k3():
    K = Kernel("k3_kernel")
    s = K.seg("main")
    NSLOT = 14
    s("s_cmp_ge_u32 s2, 224")
    s("s_cbranch_scc1 L_k3_end")
    s(f"s_load_dwordx2 s[4:5], s[0:1], {KA_X}")
    s(f"s_load_dwordx2 s[6:7], s[0:1], {KA_WO}")
    s(f"s_load_dwordx4 s[8:11], s[0:1], {KA_WOUT}")
    s(f"s_load_dwordx2 s[12:13], s[0:1], {KA_WS}")
    s("v_lshrrev_b32 v1, 6, v0")
    s("v_and_b32 v0, 63, v0")
    s("v_readfirstlane_b32 s3, v1")
    s("s_and_b32 s14, s2, 7")
    s("s_lshl_b32 s14, s14, 2")
    s("s_bfe_u32 s15, s2, 0x20003")
    s("s_add_u32 s14, s14, s15")
    s("s_lshr_b32 s15, s2, 5")
    s("v_lshlrev_b32 v2, 4, v0")
    s("v_lshrrev_b32 v3, 3, v0")
    s("v_and_b32 v4, 7, v0")
    s("v_bfe_u32 v5, v0, 4, 1")
    s("v_lshlrev_b32 v5, 2, v5")
    s("v_xor_b32 v4, v4, v5")
    s("v_mul_u32_u24 v3, 896, v3")
    s("v_lshl_add_u32 v3, v4, 4, v3")
    s("v_add_u32 v4, 7168, v3")
    s("v_bfe_u32 v5, v0, 2, 2")
    s("v_bfe_u32 v6, v0, 5, 1")
    s("v_lshl_add_u32 v5, v6, 2, v5")
    s("v_lshlrev_b32 v5, 7, v5")
    s("v_bfe_u32 v6, v0, 4, 1")
    s("v_bfe_u32 v7, v0, 1, 1")
    s("v_lshl_add_u32 v6, v6, 1, v7")
    s("v_bfe_u32 v7, v0, 3, 1")
    s("v_lshl_add_u32 v6, v7, 2, v6")
    s("v_lshl_add_u32 v5, v6, 4, v5")
    s("v_and_b32 v6, 1, v0")
    s("v_lshl_add_u32 v5, v6, 3, v5")
    s(f"s_mul_i32 s16, s3, {NSLOT*2048}")
    s("v_add_u32 v5, s16, v5")
    s("v_xor_b32 v6, 64, v5")
    srd(s, 20, 6, 448 * 896)
    srd(s, 24, 8, 896 * 896)
    srd(s, 28, 12, SZ_ACT, WS_ACT)
    srd(s, 32, 4, 2048 * 896)
    srd(s, 36, 10, 2048 * 896)
    s("s_lshl_b32 s17, s15, 7")
    s(f"s_mul_i32 s18, s3, {112*896}")
    s("s_add_u32 s18, s18, s17")
    s(f"s_mul_i32 s19, s3, {14*16*896}")
    s("s_add_u32 s19, s19, s17")
    s(f"s_mul_i32 s40, s14, {2*88*1024}")
    s("s_lshl_b32 s41, s3, 13")
    s("s_add_u32 s41, s40, s41")
    s(f"s_mul_i32 s42, s3, {14*1024}")
    s("s_add_u32 s42, s42, s40")
    s(f"s_add_u32 s42, s42, {32*1024}")
    ACT0 = 16
    WF = 192
    ACC = 0
    wo_rows = [0, 16, 28, 44, 56, 72, 84, 100]

    def issue(i):
        slot = i % NSLOT
        if i < 8:
            sr, base, off = 20, 18, wo_rows[i] * 896
            abase, aoff = 41, i * 1024
        else:
            sr, base, off = 24, 19, (i - 8) * 16 * 896
            abase, aoff = 42, (i - 8) * 1024
        s(f"s_add_u32 s44, s{base}, {off}")
        s(f"s_add_u32 m0, s16, {slot*2048}")
        s(f"buffer_load_dwordx4 v3, s[{sr}:{sr+3}], s44 offen lds", tag=f"w{i}")
        s(f"s_add_u32 m0, s16, {slot*2048+1024}")
        s(f"buffer_load_dwordx4 v4, s[{sr}:{sr+3}], s44 offen lds", tag=f"w{i}")
        s(f"s_add_u32 s45, s{abase}, {aoff}")
        s(f"s_add_u32 s46, s45, {88*1024}")
        a = ACT0 + i * 8
        s(f"buffer_load_dwordx4 {vr(a,4)}, v2, s[28:31], s45 offen")
        s(f"buffer_load_dwordx4 {vr(a+4,4)}, v2, s[28:31], s46 offen")

    for i in range(NSLOT):
        issue(i)
    s("v_and_b32 v7, 31, v0")
    s("v_mul_u32_u24 v7, 896, v7")
    s("v_bfe_u32 v8, v0, 5, 1")
    s("v_lshl_add_u32 v7, v8, 4, v7")
    s("s_lshr_b32 s47, s3, 1")
    s("s_lshl_b32 s48, s14, 1")
    s("s_add_u32 s47, s47, s48")
    s(f"s_mul_i32 s47, s47, {32*896}")
    s("s_and_b32 s48, s3, 1")
    s("s_lshl_b32 s48, s48, 6")
    s("s_add_u32 s47, s47, s48")
    s("s_add_u32 s47, s47, s17")
    XR = 208
    s(f"buffer_load_dwordx4 {vr(XR,4)}, v7, s[32:35], s47 offen")
    s(f"buffer_load_dwordx4 {vr(XR+4,4)}, v7, s[32:35], s47 offen offset:32")

    def trread(i):
        slot = i % NSLOT
        w = WF + (i & 1) * 8
        s.wait_tag(f"w{i}")
        for nt in range(2):
            for e in range(2):
                s(f"ds_read_b64_tr_b16 {vr(w+nt*4+e*2,2)}, v{5+nt} offset:{slot*2048+e*1024}")

    trread(0)
    for i in range(22):
        if i + 1 < 22:
            trread(i + 1)
        w = WF + (i & 1) * 8
        a = ACT0 + i * 8
        for nt in range(2):
            for tt in range(2):
                acc = ar((nt * 2 + tt) * 16, 16)
                c = "0" if i == 0 else acc
                s(f"v_mfma_f32_32x32x16_bf16 {acc}, {vr(w+nt*4,4)}, {vr(a+tt*4,4)}, {c}")
        if i + NSLOT < 22:
            issue(i + NSLOT)
    s("v_add_u32 v9, s16, v2")
    for q in range(4):
        for g in range(4):
            s(f"ds_write_b128 v9, {ar(q*16+g*4,4)} offset:{q*4096+g*1024}")
    s("s_waitcnt lgkmcnt(0)")
    s("s_barrier")
    s("s_and_b32 s48, s3, 1")
    s("s_lshl_b32 s48, s48, 1")
    s("s_lshr_b32 s49, s3, 1")
    s("s_add_u32 s48, s48, s49")
    s("s_lshl_b32 s48, s48, 12")
    s("v_add_u32 v9, s48, v2")
    s(f"v_add_u32 v10, {NSLOT*2048*2}, v9")
    R = 16
    for w in range(4):
        base = 9 if w < 2 else 10
        for g in range(4):
            s(f"ds_read_b128 {vr(R+w*16+g*4,4)}, v{base} offset:{(w&1)*NSLOT*2048+g*1024}")
    s(f"v_permlane32_swap_b32 v{XR}, v{XR+2}")
    s(f"v_permlane32_swap_b32 v{XR+1}, v{XR+3}")
    s(f"v_permlane32_swap_b32 v{XR+4}, v{XR+6}")
    s(f"v_permlane32_swap_b32 v{XR+5}, v{XR+7}")
    XF = 96
    for p in range(8):
        s(f"v_lshlrev_b32 v{XF+2*p}, 16, v{XR+p}")
        s(f"v_and_b32 v{XF+2*p+1}, 0xffff0000, v{XR+p}")
    for r in range(16):
        s(f"v_add_f32 v{R+r}, v{R+r}, v{R+16+r}")
        s(f"v_add_f32 v{R+32+r}, v{R+32+r}, v{R+48+r}")
        s(f"v_add_f32 v{R+r}, v{R+r}, v{XF+r}")
        s(f"v_add_f32 v{R+r}, v{R+r}, v{R+32+r}")
    O = 120
    for p in range(8):
        s(f"v_cvt_pk_bf16_f32 v{O+p}, v{R+2*p}, v{R+2*p+1}")
    s(f"v_permlane32_swap_b32 v{O}, v{O+2}")
    s(f"v_permlane32_swap_b32 v{O+1}, v{O+3}")
    s(f"v_permlane32_swap_b32 v{O+4}, v{O+6}")
    s(f"v_permlane32_swap_b32 v{O+5}, v{O+7}")
    s(f"buffer_store_dwordx4 {vr(O,4)}, v7, s[36:39], s47 offen")
    s(f"buffer_store_dwordx4 {vr(O+4,4)}, v7, s[36:39], s47 offen offset:32")
    s("L_k3_end:")
    s("s_endpgm")
    return kernel_text("k3_kernel", K.emit(), vgpr=216, sgpr=56, accum=216, agpr=64)


if __name__ == "__main__":
    print(gen_k3())
```

```python
import sys
from k3 import gen_k3, K3_LDS
HDR = open("parallel_sum__softmax_full_mha__mixer_gmlp__prompt.s.ref").read().split("; Override launch")[0]

def build(which=("k1", "k2", "k3")):
    launches = []
    bodies = []
    if "k1" in which:
        from k1 import gen_k1, K1_LDS
        launches.append(f"; @launch kernel=k1_kernel grid=(256,1,1) block=(512,1,1) lds={K1_LDS}")
        bodies.append(gen_k1())
    if "k2" in which:
        from k2 import gen_k2, K2_LDS
        launches.append(f"; @launch kernel=k2_kernel grid=(256,1,1) block=(512,1,1) lds={K2_LDS}")
        bodies.append(gen_k2())
    if "k3" in which:
        launches.append(f"; @launch kernel=k3_kernel grid=(224,1,1) block=(256,1,1) lds={K3_LDS}")
        bodies.append(gen_k3())
    return HDR + "\n".join(launches) + '\n.amdgcn_target "amdgcn-amd-amdhsa--gfx950"\n' + "\n".join(bodies)

if __name__ == "__main__":
    out = sys.argv[1]
    which = sys.argv[2].split(",") if len(sys.argv) > 2 else ("k1", "k2", "k3")
    open(out, "w").write(build(which))
```

```python
from common import *

K1_LDS = 163840
XREG = 28672
RING = 114688
WS_CS = 21 * MB
DBG_TAG = 128
WS_CSV = WS_CS + 65536
NHELP_CS = 25
XCH = 6 * 4096
NONCE_LDS = 3 * XREG + XCH + 2048
BUF = [('T', 0), ('T', 1), ('T', 2), ('X', 0), ('X', 1), ('X', 2), ('X', 3),
       ('X', 4), ('X', 5), ('T', 0), ('T', 1), ('T', 2), ('X', 0), ('X', 1)]
ISSUE_AT = {2: [3], 3: [4], 4: [9], 6: [5], 7: [6], 8: [10], 10: [7], 11: [8], 12: [11], 22: [12], 23: [13]}
BARRIER_COVERS = {0: [1], 1: [2], 2: [3, 4], 4: [5, 6], 5: [7, 8, 9, 10, 11], 10: [12, 13]}
XLINES_AT = {-1: [0, 1], 0: [2, 3], 1: [4, 5], 2: [6]}


def gen_k1():
    K = Kernel("k1_kernel")
    XF, ACCZ, ACCQ, ACCV = 16, 128, 160, 176
    V_L16, V_P1D, V_P2D, V_P2A = 1, 2, 3, 5
    V_XA = 8
    V_RSTD, V_NMU, V_C0, V_S0, V_S1, V_H16 = 12, 13, 14, 15, 192, 193
    T = 194
    V_P1A = 210
    CS = 216
    s = K.seg("pro")
    s("s_cmp_lt_u32 s2, 32")
    s("s_cbranch_scc1 L_k1_pref")
    s("s_cmp_ge_u32 s2, 256")
    s("s_cbranch_scc1 L_k1_end")
    s("s_sub_u32 s2, s2, 32")
    s(f"s_load_dwordx4 s[4:7], s[0:1], {KA_X}")
    s(f"s_load_dwordx2 s[8:9], s[0:1], {KA_WIN}")
    s(f"s_load_dwordx4 s[12:15], s[0:1], {KA_DBG}")
    s("s_memrealtime s[10:11]")
    stamp(s, 0)
    stamp_rt(s, 10)
    s("v_lshrrev_b32 v1, 6, v0")
    s("v_and_b32 v0, 63, v0")
    s("v_readfirstlane_b32 s3, v1")
    s("s_bfe_u32 s48, s2, 0x20001")
    s("s_lshl_b32 s48, s48, 2")
    s("s_bfe_u32 s49, s2, 0x20003")
    s("s_add_u32 s48, s48, s49")
    s("s_lshr_b32 s50, s2, 5")
    s("s_and_b32 s51, s2, 1")
    s("s_mul_i32 s49, s51, 7")
    s("s_add_u32 s49, s49, s50")
    s("s_and_b32 s66, s3, 3")
    s("s_lshl_b32 s52, s48, 2")
    s("s_add_u32 s52, s52, s66")
    s(f"s_mul_i32 s53, s66, {XREG}")
    s(f"v_lshrrev_b32 v{T+2}, 3, v0")
    s(f"v_mul_u32_u24 v{T+2}, 896, v{T+2}")
    s(f"v_lshrrev_b32 v{T+3}, 4, v0")
    s(f"v_sub_u32 v{T}, v0, v{T+3}")
    s(f"v_and_b32 v{T}, 7, v{T}")
    s(f"v_xor_b32 v{T+1}, 4, v{T}")
    s(f"v_lshl_add_u32 v{T}, v{T}, 4, v{T+2}")
    s(f"v_lshl_add_u32 v{T+1}, v{T+1}, 4, v{T+2}")
    s(f"v_lshlrev_b32 v{T+4}, 2, v{T+3}")
    s(f"v_sub_u32 v{T+4}, v0, v{T+4}")
    s(f"v_and_b32 v{T+4}, 15, v{T+4}")
    s(f"v_mul_u32_u24 v{V_P1D}, 3584, v{T+3}")
    s(f"v_lshl_add_u32 v{V_P1D}, v{T+4}, 4, v{V_P1D}")
    s(f"s_mul_i32 s54, s52, {32*896}")
    s("s_lshl_b32 s56, s49, 8")
    s(f"s_mul_i32 s57, s3, {8*3584}")
    s("s_add_u32 s56, s56, s57")
    s("s_lshl_b32 s57, s3, 11")
    s(f"s_add_u32 s57, s57, {RING}")
    s("s_lshr_b32 s69, s3, 1")
    s(f"s_mul_i32 s69, s69, {XREG}")
    s("s_and_b32 s70, s3, 1")
    s("s_lshl_b32 s70, s70, 11")
    s("s_add_u32 s69, s69, s70")
    s("s_waitcnt lgkmcnt(0)")
    srd(s, 16, 4, 2048 * 896)
    srd(s, 24, 8, 448 * 3584)
    s("s_cmp_ge_u32 s3, 4")
    s("s_cbranch_scc1 L_k1_role1")

    def role(hf):
        R = f"r{hf}"
        names = []

        def seg(n):
            names.append(R + n)
            return K.seg(R + n)
        s = seg("a")
        if hf:
            s("L_k1_role1:")
        own = [m for m in range(7) if (m & 1) == hf]

        def dma_p1(sg, st):
            for ii in range(2):
                sg(f"s_add_u32 s55, s56, {(64*st + 4*ii)*3584}")
                kind, idx = BUF[st]
                if kind == 'T':
                    sg(f"s_add_u32 m0, s57, {idx*16384 + ii*1024}")
                else:
                    sg(f"s_add_u32 m0, s69, {idx*4096 + ii*1024}")
                sg(f"buffer_load_dwordx4 v{V_P1D}, s[24:27], s55 offen lds", tag=f"w{st}")

        def dma_p2(sg, st):
            sg(f"s_mov_b32 s55, {64*st*2688}")
            kind, idx = BUF[7 + st]
            for ii in range(2 if hf == 0 else 1):
                if kind == 'T':
                    sg(f"s_add_u32 m0, s{36+ii}, {idx*16384}")
                else:
                    sg(f"s_add_u32 m0, s{38+ii}, {idx*4096}")
                sg(f"buffer_load_dwordx4 v{V_P2D+ii}, s[20:23], s55 offen lds", tag=f"w{7+st}")

        def dma_stage(sg, n):
            if n < 7:
                dma_p1(sg, n)
            elif n < 14:
                dma_p2(sg, n - 7)

        def dma_x(sg, m, vb=T):
            for rg in range(4):
                sg(f"s_add_u32 s55, s54, {rg*8*896 + m*128}")
                sg(f"s_add_u32 m0, s53, {m*4096 + rg*1024}")
                sg(f"buffer_load_dwordx4 v{vb+(rg&1)}, s[16:19], s55 offen lds", tag=f"x{m}")

        dma_x(s, own[0])
        dma_p1(s, 0)
        dma_x(s, own[1])
        dma_p1(s, 1)
        s(f"v_bfe_u32 v{T+2}, v0, 2, 2")
        s(f"v_bfe_u32 v{T+3}, v0, 5, 1")
        s(f"v_lshl_add_u32 v{T+4}, v{T+3}, 3, v{T+2}")
        s(f"v_bfe_u32 v{T+5}, v0, 4, 1")
        s(f"v_bfe_u32 v{T+6}, v0, 1, 1")
        s(f"v_lshl_add_u32 v{T+6}, v{T+5}, 1, v{T+6}")
        s(f"v_lshl_add_u32 v{T+6}, v{T+2}, 2, v{T+6}")
        s(f"v_and_b32 v{T+7}, 1, v0")
        s(f"v_lshlrev_b32 v{T+7}, 3, v{T+7}")
        s(f"v_lshl_add_u32 v{T+7}, v{T+4}, 8, v{T+7}")
        for jj in range(2):
            s(f"v_add_u32 v{T+11}, {4*(2*hf+jj)}, v{T+6}")
            s(f"v_and_b32 v{T+11}, 15, v{T+11}")
            s(f"v_lshl_add_u32 v{V_P1A+3*jj}, v{T+11}, 4, v{T+7}")
            s(f"v_add_u32 v{V_P1A+3*jj+1}, {2*XREG}, v{V_P1A+3*jj}")
            s(f"v_add_u32 v{V_P1A+3*jj+2}, {RING}, v{V_P1A+3*jj}")
        s(f"v_mul_u32_u24 v{V_P2A}, 192, v{T+4}")
        s(f"v_lshl_add_u32 v{V_P2A}, v{T+5}, 5, v{V_P2A}")
        s(f"v_and_b32 v{T+7}, 3, v0")
        s(f"v_lshl_add_u32 v{V_P2A}, v{T+7}, 3, v{V_P2A}")
        s(f"v_add_u32 v{V_P2A+1}, {2*XREG}, v{V_P2A}")
        s(f"v_add_u32 v{V_P2A+2}, {RING}, v{V_P2A}")
        s(f"v_lshlrev_b32 v{V_L16}, 4, v0")
        s(f"v_mul_u32_u24 v{V_H16}, 96, v{T+3}")
        s(f"v_and_b32 v{T+2}, 31, v0")
        s(f"v_lshrrev_b32 v{T+4}, 1, v{T+2}")
        s(f"v_add_u32 v{T+4}, v{T+4}, v{T+3}")
        s(f"v_lshlrev_b32 v{T+2}, 7, v{T+2}")
        s(f"v_add_u32 v{T+2}, s53, v{T+2}")
        for q in range(4):
            s(f"v_add_u32 v{T+11}, {2*q}, v{T+4}")
            s(f"v_and_b32 v{T+11}, 7, v{T+11}")
            s(f"v_lshl_add_u32 v{V_XA+q}, v{T+11}, 4, v{T+2}")
        s(f"v_mov_b32 v{CS}, v{T}")
        s(f"v_mov_b32 v{CS+1}, v{T+1}")
        srd(s, 20, 6, 448 * 2688)
        srd(s, 28, 14, 24 * MB)
        srd(s, 44, 12, 256)
        if hf == 0:
            s("s_or_b32 s10, s10, 1")
            s(f"v_mov_b32 v{T+8}, s10")
            s(f"v_mov_b32 v{T+9}, 0")
            s("s_lshl_b32 s58, s48, 2")
            s(f"v_mov_b32 v{T+10}, s58")
            s("s_lshl_b32 s59, s3, 1")
            s("s_sub_u32 s59, s51, s59")
            s("s_cmp_eq_u32 s59, 1")
            s("s_cbranch_scc0 L_k1_nononce")
            n = seg("nonce")
            n("s_mov_b64 exec, 1")
            n(f"buffer_atomic_cmpswap v[{T+8}:{T+9}], v{T+10}, s[44:47], 0 offen sc0")
            n("s_mov_b64 exec, -1")
            s = seg("b")
            s("L_k1_nononce:")
        s("s_lshl_b32 s58, s3, 6")
        s("s_lshl_b32 s59, s49, 7")
        s("s_lshl_b32 s60, s49, 6")
        s("s_add_u32 s60, s60, 1664")
        s("s_mov_b32 s61, 43691")
        for ii in range(2 if hf == 0 else 1):
            s(f"v_add_u32 v{T+2}, s58, v0")
            if ii:
                s(f"v_add_u32 v{T+2}, 512, v{T+2}")
            s(f"v_mul_lo_u32 v{T+3}, v{T+2}, s61")
            s(f"v_lshrrev_b32 v{T+3}, 19, v{T+3}")
            s(f"v_mad_i32_i24 v{T+4}, v{T+3}, -12, v{T+2}")
            s(f"v_mov_b32 v{T+5}, s59")
            s(f"v_mov_b32 v{T+6}, s60")
            s(f"v_cmp_gt_u32 vcc, 8, v{T+4}")
            s(f"v_cndmask_b32 v{T+5}, v{T+6}, v{T+5}, vcc")
            s(f"v_lshl_add_u32 v{T+5}, v{T+4}, 4, v{T+5}")
            s(f"v_mul_u32_u24 v{T+3}, 2688, v{T+3}")
            s(f"v_add_u32 v{V_P2D+ii}, v{T+3}, v{T+5}")
        for ii in range(2 if hf == 0 else 1):
            s(f"s_add_u32 s58, s3, {8*ii}")
            s("s_mul_i32 s59, s58, 43")
            s("s_lshr_b32 s59, s59, 7")
            s("s_mul_i32 s60, s59, 3")
            s("s_sub_u32 s60, s58, s60")
            s("s_lshl_b32 s60, s60, 10")
            s("s_lshl_b32 s61, s59, 12")
            s("s_add_u32 s61, s61, s60")
            s(f"s_add_u32 s{36+ii}, s61, {RING}")
            s(f"s_mul_i32 s61, s59, {XREG}")
            s(f"s_add_u32 s{38+ii}, s61, s60")
        s(f"v_mov_b32 v{V_C0}, 0xc0135761")
        for a_ in range(4):
            s(f"v_mov_b32 v{T+4+a_}, 0")
        s(f"v_mov_b32 v{V_S0}, 0")
        s(f"v_mov_b32 v{V_S1}, 0")
        stamp(s, 1)

        def xread(m):
            return [mk(f"ds_read_b128 {vr(XF+(4*m+q)*4,4)}, v{V_XA+q} offset:{m*4096}") for q in range(4)]

        def xwait(sg, n):
            for m in XLINES_AT.get(n, []):
                if m in own:
                    sg.wait_tag(f"x{m}")

        def trread(k):
            n, ksl = divmod(k, 4)
            kind, idx = BUF[n]
            if kind == 'T':
                sel, base = 2, idx * 16384 + ksl * 4096
            else:
                sel, base = ksl >> 1, (ksl & 1) * XREG + idx * 4096
            L = []
            if k < 28:
                for jj in range(2):
                    for e in range(2):
                        L.append(mk(f"ds_read_b64_tr_b16 {ar((k%3)*8 + jj*4 + e*2, 2)}, v{V_P1A+3*jj+sel} offset:{base + 4*e*256}"))
            else:
                tiles = [hf] + ([2] if ((k >> 1) & 1) == hf else [])
                for jj, tl in enumerate(tiles):
                    for e in range(2):
                        L.append(mk(f"ds_read_b64_tr_b16 {ar((k%3)*8 + jj*4 + e*2, 2)}, v{V_P2A+sel} offset:{base + tl*64 + 4*e*192}"))
            return L

        xwait(s, -1)
        s.wait_tag("w0")
        stamp(s, 2)
        s("s_barrier")
        stamp(s, 3)
        s.extend(xread(0))
        s.extend(trread(0))
        s.extend(trread(1))
        s.extend(xread(1))
        dma_x(s, own[2], CS)
        dma_p1(s, 2)
        stamp(s, 4)

        def stats(m):
            L = []
            for r in range(0, 16, 2):
                a, b = XF + m * 16 + r, XF + m * 16 + r + 1
                L += [mk(f"v_lshlrev_b32 v{T}, 16, v{a}"), mk(f"v_and_b32 v{T+1}, 0xffff0000, v{a}"),
                      mk(f"v_lshlrev_b32 v{T+2}, 16, v{b}"), mk(f"v_and_b32 v{T+3}, 0xffff0000, v{b}"),
                      mk(f"v_add_f32 v{T+4}, v{T+4}, v{T}"), mk(f"v_fmac_f32 v{T+6}, v{T}, v{T}"),
                      mk(f"v_add_f32 v{T+5}, v{T+5}, v{T+1}"), mk(f"v_fmac_f32 v{T+7}, v{T+1}, v{T+1}"),
                      mk(f"v_add_f32 v{T+4}, v{T+4}, v{T+2}"), mk(f"v_fmac_f32 v{T+6}, v{T+2}, v{T+2}"),
                      mk(f"v_add_f32 v{T+5}, v{T+5}, v{T+3}"), mk(f"v_fmac_f32 v{T+7}, v{T+3}, v{T+3}")]
            return L
        sfill = {k: [] for k in range(28)}
        win = {0: (1, 5), 1: (1, 6), 2: (5, 10), 3: (6, 11), 4: (10, 15), 5: (11, 17), 6: (15, 21)}
        for m in own:
            L = stats(m)
            a_, b_ = win[m]
            for i, k in enumerate(range(a_, b_)):
                lo = len(L) * i // (b_ - a_) // 12 * 12
                hi = len(L) * (i + 1) // (b_ - a_) // 12 * 12
                sfill[k] += L[lo:hi]

        GQ = [CS, CS + 4, CS + 8, CS + 12, T + 4, V_XA]

        def csreg(r):
            return GQ[r // 3] + r % 3

        cnt = [0]

        def csfetch(sg_name):
            nonlocal s
            i_ = cnt[0]
            cnt[0] += 1
            lab = f"L_k1_cs{hf}_{i_}"
            s("s_mov_b32 s61, 0")
            lp_ = seg(f"csl{i_}")
            lp_(f"{lab}:")
            lp_(f"v_mov_b32 v{T+13}, s41")
            lp_(f"buffer_load_dword v{T+10}, v{T+13}, s[44:47], 0 offen sc0 sc1")
            for q in range(6):
                lp_(f"buffer_load_dwordx4 {vr(GQ[q],4)}, v{V_H16}, s[28:31], s40 offen offset:{q*16} sc0 sc1")
            return lab

        def cscheck(lab):
            nonlocal s
            i_ = cnt[0] - 1
            ck = seg(f"csc{i_}")
            ck(f"v_xor_b32 v{T+13}, v{GQ[0]+3}, v{T+10}")
            for q in range(1, 6):
                ck(f"v_xor_b32 v{T+11}, v{GQ[q]+3}, v{T+10}")
                ck(f"v_or_b32 v{T+13}, v{T+13}, v{T+11}")
            ck(f"v_cmp_ne_u32 vcc, 0, v{T+13}")
            ck(f"v_cmp_eq_u32 s[62:63], 0, v{T+10}")
            ck("s_or_b64 vcc, vcc, s[62:63]")
            ck("s_add_u32 s61, s61, 1")
            ck("s_cmp_eq_u64 vcc, 0")
            ck(f"s_cbranch_scc1 {lab}_ok")
            rt_ = seg(f"csr{i_}")
            rt_("s_sleep 4")
            rt_(f"v_mov_b32 v{T+13}, s41")
            rt_(f"buffer_load_dword v{T+10}, v{T+13}, s[44:47], 0 offen sc0 sc1")
            for q in range(6):
                rt_(f"buffer_load_dwordx4 {vr(GQ[q],4)}, v{V_H16}, s[28:31], s40 offen offset:{q*16} sc0 sc1")
            rt_("s_cmp_lt_u32 s61, 0x40000")
            rt_(f"s_cbranch_scc1 {lab}_chk")
            ck.ins.insert(0, mk(f"{lab}_chk:"))
            s = seg(f"cso{i_}")
            s(f"{lab}_ok:")

        def lnapply(acc):
            L = []
            for r in range(16):
                L.append(mk(f"v_fma_f32 v{acc+r}, v{V_NMU}, v{csreg(r)}, v{acc+r}"))
            for r in range(16):
                L.append(mk(f"v_mul_f32 v{acc+r}, v{acc+r}, v{V_RSTD}"))
            return L

        def gelu(e0):
            z0, z1 = ACCZ + e0, ACCZ + e0 + 1
            a, b = T + (e0 & 2), T + 1 + (e0 & 2)
            return [mk(f"v_mul_f32 v{a}, v{z0}, v{z0}"), mk(f"v_mul_f32 v{b}, v{z1}, v{z1}"),
                    mk(f"v_fmamk_f32 v{a}, v{a}, 0xbdd2d3e8, v{V_C0}"), mk(f"v_fmamk_f32 v{b}, v{b}, 0xbdd2d3e8, v{V_C0}"),
                    mk(f"v_mul_f32 v{a}, v{a}, v{z0}"), mk(f"v_mul_f32 v{b}, v{b}, v{z1}"),
                    mk(f"v_exp_f32 v{a}, v{a}"), mk(f"v_exp_f32 v{b}, v{b}"),
                    mk(f"v_add_f32 v{a}, 1.0, v{a}"), mk(f"v_add_f32 v{b}, 1.0, v{b}"),
                    mk(f"v_rcp_f32 v{a}, v{a}"), mk(f"v_rcp_f32 v{b}, v{b}"),
                    mk(f"v_mul_f32 v{z0}, v{z0}, v{a}"), mk(f"v_mul_f32 v{z1}, v{z1}, v{b}"),
                    mk(f"v_add_f32 v{V_S0}, v{V_S0}, v{z0}"), mk(f"v_fmac_f32 v{V_S1}, v{z0}, v{z0}"),
                    mk(f"v_add_f32 v{V_S0}, v{V_S0}, v{z1}"), mk(f"v_fmac_f32 v{V_S1}, v{z1}, v{z1}")]
        MARK0, MARK1, MARK1C, MARK2 = mk("s_nop 0"), mk("s_nop 0"), mk("s_nop 0"), mk("s_nop 0")
        gel = [MARK0] + lnapply(ACCZ) + [MARK1]
        for e0 in range(0, 16, 2):
            gel += gelu(e0)
        gel += [MARK1C] + lnapply(ACCZ + 16) + [MARK2]
        labs = {}
        for e0 in range(16, 32, 2):
            gel += gelu(e0)
        ng = len(gel)
        GK = 24
        vfirst = True
        for k in range(56):
            n, ksl = divmod(k, 4)
            if k == 28:
                stamp(s, 5)
            if k < 28:
                fil = sfill[k]
            else:
                kk = k - 28
                fil = gel[ng * kk // GK: ng * (kk + 1) // GK] if kk < GK else []
            main = []
            if k < 28:
                for jj in range(2):
                    acc = vr(ACCZ + 16 * jj, 16)
                    main.append(mk(f"v_mfma_f32_32x32x16_bf16 {acc}, {ar((k%3)*8 + jj*4, 4)}, {vr(XF+k*4,4)}, {'0' if k == 0 else acc}"))
            else:
                kk = k - 28
                acc = vr(ACCQ, 16)
                main.append(mk(f"v_mfma_f32_32x32x16_bf16 {acc}, {ar((k%3)*8, 4)}, {vr(XF+kk*4,4)}, {'0' if kk == 0 else acc}"))
                if ((k >> 1) & 1) == hf:
                    acc = vr(ACCV, 16)
                    main.append(mk(f"v_mfma_f32_32x32x16_bf16 {acc}, {vr(XF+kk*4,4)}, {ar((k%3)*8+4, 4)}, {'0' if vfirst else acc}"))
                    vfirst = False
            body = interleave(main, fil)
            s.add(body[0])
            if k + 2 < 56:
                s.extend(trread(k + 2))
            if k == 0 and hf == 0:
                dma_x(s, own[3], CS)
            for st_ in ISSUE_AT.get(k, []):
                dma_stage(s, st_)
            for I in body[1:]:
                if I is MARK0:
                    cscheck(labs[0])
                elif I is MARK1:
                    s("s_add_u32 s40, s40, 192")
                    labs[1] = csfetch("f1")
                    s = seg("f1b")
                elif I is MARK1C:
                    cscheck(labs[1])
                elif I is MARK2:
                    s("s_lshl_b32 s40, s49, 1")
                    s(f"s_add_u32 s40, s40, {hf}")
                    s("s_and_b32 s41, s40, 0xfffc")
                    s(f"s_add_u32 s41, s41, {DBG_TAG}")
                    s("s_mul_i32 s40, s40, 192")
                    s(f"s_add_u32 s40, s40, {WS_CS}")
                    labs[2] = csfetch("f2")
                    s = seg("f2b")
                else:
                    s.add(I)
            if ksl == 1 and n in BARRIER_COVERS:
                if n == 5:
                    s(f"v_add_f32 v{T+4}, v{T+4}, v{T+5}")
                    s(f"v_add_f32 v{T+5}, v{T+6}, v{T+7}")
                    s(f"v_mov_b32 v{T+6}, v{T+4}")
                    s(f"v_mov_b32 v{T+7}, v{T+5}")
                    s(f"v_permlane32_swap_b32 v{T+4}, v{T+6}")
                    s(f"v_permlane32_swap_b32 v{T+5}, v{T+7}")
                    s(f"v_and_b32 v{T+12}, 31, v0")
                    s(f"v_lshlrev_b32 v{T+12}, 3, v{T+12}")
                    s(f"v_add_u32 v{T+12}, s53, v{T+12}")
                    s(f"v_add_f32 v{T+4}, v{T+4}, v{T+6}")
                    s(f"v_add_f32 v{T+5}, v{T+5}, v{T+7}")
                    s(f"ds_write_b64 v{T+12}, v[{T+4}:{T+5}] offset:{XCH + hf*256}")
                    if hf == 0:
                        s("s_cmp_lg_u32 s3, 0")
                        s("s_cbranch_scc1 L_k1_nn2")
                        n2 = seg("nonce2")
                        n2(f"v_cmp_eq_u32 vcc, 0, v{T+8}")
                        n2(f"v_mov_b32 v{T+9}, s10")
                        n2(f"v_cndmask_b32 v{T+8}, v{T+8}, v{T+9}, vcc")
                        n2(f"v_mov_b32 v{T+9}, {NONCE_LDS}")
                        n2("s_mov_b64 exec, 1")
                        n2(f"ds_write_b32 v{T+9}, v{T+8}")
                        n2("s_mov_b64 exec, -1")
                        s = seg("c")
                        s("L_k1_nn2:")
                s("s_waitcnt lgkmcnt(0)")
                xwait(s, n)
                for st_ in BARRIER_COVERS[n]:
                    s.wait_tag(f"w{st_}")
                s("s_barrier")
                for m in XLINES_AT.get(n, []):
                    s.extend(xread(m))
                if n == 5:
                    s(f"ds_read_b64 v[{T+6}:{T+7}], v{T+12} offset:{XCH + (1-hf)*256}")
                    s(f"v_mov_b32 v{T+13}, {NONCE_LDS}")
                    s(f"ds_read_b32 v{T+9}, v{T+13}")
            if k == 23:
                s(f"v_add_f32 v{T+4}, v{T+4}, v{T+6}")
                s(f"v_add_f32 v{T+5}, v{T+5}, v{T+7}")
                s(f"v_mul_f32 v{T+4}, 0x3b124925, v{T+4}")
                s(f"v_mul_f32 v{T+5}, 0x3b124925, v{T+5}")
                s(f"v_fma_f32 v{T+5}, -v{T+4}, v{T+4}, v{T+5}")
                s(f"v_max_f32 v{T+5}, 0, v{T+5}")
                s(f"v_add_f32 v{T+5}, 0x3727c5ac, v{T+5}")
                s(f"v_rsq_f32 v{V_RSTD}, v{T+5}")
                s(f"v_sub_f32 v{V_NMU}, 0, v{T+4}")
                if hf == 0:
                    s(f"v_mov_b32 v{T+4}, v{V_RSTD}")
                    s(f"v_mul_f32 v{T+5}, v{V_NMU}, v{V_RSTD}")
                    s(f"ds_write_b64 v{T+12}, v[{T+4}:{T+5}] offset:{XCH + 512}")
            if k == 25:
                s("s_lshl_b32 s40, s49, 2")
                s(f"s_add_u32 s40, s40, {42 + 2*hf}")
                s("s_and_b32 s41, s40, 0xfffc")
                s(f"s_add_u32 s41, s41, {DBG_TAG}")
                s("s_mul_i32 s40, s40, 192")
                s(f"s_add_u32 s40, s40, {WS_CS}")
                labs[0] = csfetch("f0")
                s = seg("f0b")
            if k == 28 + GK:
                cscheck(labs[2])
                s(f"v_mov_b32 v{T}, v{V_S0}")
                s(f"v_mov_b32 v{T+1}, v{V_S1}")
                s(f"v_permlane32_swap_b32 v{V_S0}, v{T}")
                s(f"v_permlane32_swap_b32 v{V_S1}, v{T+1}")
                s(f"v_add_f32 v{T+8}, v{V_S0}, v{T}")
                s(f"v_add_f32 v{T+10}, v{V_S1}, v{T+1}")
                s("s_cmp_eq_u32 s51, 0")
                s(f"s_cbranch_scc1 L_k1_nopub{hf}")
                pb = seg("pub")
                pb("s_mul_i32 s55, s48, 14")
                pb("s_lshl_b32 s59, s55, 11")
                pb("s_lshl_b32 s60, s66, 9")
                pb("s_add_u32 s59, s59, s60")
                pb(f"s_add_u32 s59, s59, {WS_STATS}")
                pb("s_lshl_b32 s60, s50, 12")
                pb("s_add_u32 s60, s60, s59")
                pb(f"v_and_b32 v{T+2}, 31, v0")
                pb(f"v_lshlrev_b32 v{T+2}, 4, v{T+2}")
                pb(f"v_mov_b32 v{T+11}, v{T+9}")
                pb("s_mov_b32 exec_hi, 0")
                pb(f"buffer_store_dwordx4 {vr(T+8,4)}, v{T+2}, s[28:31], s60 offen offset:{hf*2048} sc0 sc1")
                pb("s_mov_b64 exec, -1")
                pb(f"s_branch L_k1_pubd{hf}")
                za = seg("z1st")
                za(f"L_k1_nopub{hf}:")
                za("s_mul_i32 s55, s52, 56")
                za("s_lshl_b32 s60, s50, 3")
                za("s_add_u32 s55, s55, s60")
                za("s_lshl_b32 s55, s55, 10")
                za(f"s_add_u32 s55, s55, {WS_Z1 + hf*4096}")
                for jj in range(2):
                    P = ACCZ + 16 * jj
                    for p in range(8):
                        za(f"v_cvt_pk_bf16_f32 v{P+p}, v{ACCZ+16*jj+2*p}, v{ACCZ+16*jj+2*p+1}")
                    za(f"buffer_store_dwordx4 {vr(P,4)}, v{V_L16}, s[28:31], s55 offen offset:{jj*2048}")
                    za(f"buffer_store_dwordx4 {vr(P+4,4)}, v{V_L16}, s[28:31], s55 offen offset:{jj*2048+1024}")
                s = seg("d")
                s(f"L_k1_pubd{hf}:")
        stamp(s, 6)
        U = 16
        s(f"v_and_b32 v{U+2}, 31, v0")
        s(f"v_lshrrev_b32 v{U+3}, 5, v0")
        s(f"v_lshlrev_b32 v{U+4}, 4, v{U+2}")
        s("s_lshl_b32 s55, s66, 12")
        s(f"v_add_u32 v{U+5}, s55, v{V_L16}")
        if hf:
            for gq in range(4):
                s(f"ds_write_b128 v{U+5}, {vr(ACCV+4*gq,4)} offset:{RING+gq*1024}") if False else None
            s(f"v_add_u32 v{U+5}, {RING}, v{U+5}")
            for gq in range(4):
                s(f"ds_write_b128 v{U+5}, {vr(ACCV+4*gq,4)} offset:{gq*1024}")
            s("s_waitcnt lgkmcnt(0)")
        else:
            s(f"v_add_u32 v{U+5}, {RING}, v{U+5}")
            s("s_lshl_b32 s40, s49, 8")
            s(f"s_add_u32 s40, s40, {WS_CSV + 896*8}")
            s("s_add_u32 s41, s49, 28")
            s("s_and_b32 s41, s41, 0xfffc")
            s(f"s_add_u32 s41, s41, {DBG_TAG}")
            s(f"v_lshlrev_b32 v{U+10}, 3, v{U+2}")
            s(f"v_mov_b32 v{U+11}, s41")
            s("s_mov_b32 s61, 0")
            vp = seg("vpoll")
            vp("L_k1_vpoll:")
            vp(f"buffer_load_dwordx2 v[{U+8}:{U+9}], v{U+10}, s[28:31], s40 offen sc0 sc1")
            vp(f"buffer_load_dword v{U+12}, v{U+11}, s[44:47], 0 offen sc0 sc1")
            vp(f"v_cmp_ne_u32 vcc, v{U+9}, v{U+12}")
            vp(f"v_cmp_eq_u32 s[62:63], 0, v{U+12}")
            vp("s_or_b64 vcc, vcc, s[62:63]")
            vp("s_add_u32 s61, s61, 1")
            vp("s_cmp_eq_u64 vcc, 0")
            vp("s_cbranch_scc1 L_k1_vok")
            vp("s_cmp_lt_u32 s61, 0x40000")
            vp("s_cbranch_scc1 L_k1_vpoll")
            s = seg("vok")
            s("L_k1_vok:")
            s(f"v_lshlrev_b32 v{U+6}, 5, v{U+3}")
            s(f"v_add_u32 v{U+6}, s53, v{U+6}")
            for q in range(4):
                s(f"ds_read_b128 {vr(32+8*q,4)}, v{U+6} offset:{XCH+512+q*64}")
                s(f"ds_read_b128 {vr(36+8*q,4)}, v{U+6} offset:{XCH+512+q*64+16}")
        s("s_barrier")
        if hf == 0:
            for gq in range(4):
                s(f"ds_read_b128 {vr(112+4*gq,4)}, v{U+5} offset:{gq*1024}")
        s("s_cmp_eq_u32 s51, 0")
        s("s_cselect_b32 s62, 0x3e8b97f6, 1.0")
        s("s_cselect_b32 s63, 17, 18")
        s("s_cselect_b32 s64, 11, 12")
        s("s_lshl_b32 s64, s52, s64")
        s(f"s_cselect_b32 s65, {WS_QF}, {WS_KV}") if False else None
        s("s_mul_i32 s65, s51, %d" % (WS_KV - WS_QF))
        s("s_add_u32 s64, s64, s65")
        c = s
        c(f"v_mul_f32 v{U+13}, s62, v{V_RSTD}")
        c("s_lshl_b32 s55, s50, 4")
        c(f"v_add_u32 v{U+5}, s55, v{U+3}")
        for rq in range(4):
            A = ACCQ + 4 * rq
            P = 64 + rq * 2
            W = 80 + (rq & 1) * 4
            for i in range(4):
                c(f"v_fma_f32 v{A+i}, v{V_NMU}, v{csreg(4*rq+i)}, v{A+i}")
            for i in range(4):
                c(f"v_mul_f32 v{A+i}, v{A+i}, v{U+13}")
            c(f"v_add_u32 v{W}, {8*hf+2*rq}, v{U+5}")
            c(f"v_mul_u32_u24 v{W+1}, 9363, v{W}")
            c(f"v_lshrrev_b32 v{W+1}, 16, v{W+1}")
            c(f"v_mad_i32_i24 v{W}, v{W+1}, -7, v{W}")
            c(f"v_lshlrev_b32 v{W+1}, s63, v{W+1}")
            c(f"v_add_u32 v{W+1}, v{W+1}, v{U+4}")
            c(f"v_and_b32 v{W+2}, 4, v{W}")
            c(f"v_lshl_add_u32 v{W+1}, v{W+2}, 8, v{W+1}")
            c(f"v_and_b32 v{W+2}, 1, v{W}")
            c(f"v_lshl_add_u32 v{W+1}, v{W+2}, 9, v{W+1}")
            c(f"v_and_b32 v{W+2}, 2, v{W}")
            c(f"v_lshl_add_u32 v{W+1}, v{W+2}, 2, v{W+1}")
            c(f"v_cvt_pk_bf16_f32 v{P}, v{A}, v{A+1}")
            c(f"v_cvt_pk_bf16_f32 v{P+1}, v{A+2}, v{A+3}")
            c(f"buffer_store_dwordx2 {vr(P,2)}, v{W+1}, s[28:31], s64 offen")
        c("s_lshl_b32 s65, s52, 12")
        c(f"s_add_u32 s65, s65, {WS_KV}")
        if hf == 0:
            c("s_lshl_b32 s55, s49, 5")
            c(f"v_add_u32 v{U+6}, s55, v{U+2}")
            c(f"v_mul_u32_u24 v{U+7}, 2341, v{U+6}")
            c(f"v_lshrrev_b32 v{U+7}, 16, v{U+7}")
            c("s_mov_b32 s55, -28")
            c(f"v_mad_i32_i24 v{U+6}, v{U+7}, s55, v{U+6}")
            c(f"v_lshl_add_u32 v{U+6}, v{U+3}, 5, v{U+6}")
            c(f"v_lshlrev_b32 v{U+6}, 4, v{U+6}")
            c(f"v_lshl_add_u32 v{U+6}, v{U+7}, 18, v{U+6}")
            P = 88
            for r in range(16):
                c(f"v_add_f32 v{ACCV+r}, v{ACCV+r}, v{112+r}")
            for r in range(16):
                c(f"v_mul_f32 v{33+2*r}, v{33+2*r}, v{U+8}")
            for r in range(16):
                c(f"v_fma_f32 v{ACCV+r}, v{ACCV+r}, v{32+2*r}, v{33+2*r}")
            for p in range(8):
                c(f"v_cvt_pk_bf16_f32 v{P+p}, v{ACCV+2*p}, v{ACCV+2*p+1}")
            c(f"buffer_store_dwordx4 {vr(P,4)}, v{U+6}, s[28:31], s65 offen offset:2048")
            c(f"buffer_store_dwordx4 {vr(P+4,4)}, v{U+6}, s[28:31], s65 offen offset:3072")
        else:
            c("s_add_u32 s55, s49, 14")
            c("s_cmp_lt_u32 s49, 2")
            c("s_cselect_b32 s55, s55, s49")
            c("s_sub_u32 s55, s55, s49")
            c(f"v_mul_u32_u24 v{U+7}, s55, v{U+3}")
            c(f"v_add_u32 v{U+7}, s49, v{U+7}")
            c(f"v_lshlrev_b32 v{U+7}, 18, v{U+7}")
            c(f"v_add_u32 v{U+6}, v{U+7}, v{U+4}")
            c("v_mov_b32 v96, 0x3f803f80")
            c("v_mov_b32 v97, 0x3f80")
            c(f"buffer_store_dwordx2 v[96:97], v{U+6}, s[28:31], s65 offen offset:{1024+512+8}")
            c("v_and_b32 v98, 3, v0")
            c("v_bfe_u32 v99, v0, 2, 1")
            c("v_lshl_add_u32 v99, v99, 5, v98")
            c("v_lshlrev_b32 v99, 4, v99")
            c("v_bfe_u32 v100, v0, 3, 1")
            c("v_lshl_add_u32 v99, v100, 10, v99")
            c(f"v_add_u32 v99, v99, v{U+7}")
            c("v_cmp_eq_u32 vcc, 0, v98")
            c("v_cndmask_b32 v100, 0, v96, vcc")
            c("v_mov_b32 v101, v100")
            c("v_mov_b32 v102, v100")
            c("v_mov_b32 v103, v100")
            c(f"buffer_store_dwordx4 v[100:103], v99, s[28:31], s65 offen offset:{2048+28*16}")
        stamp(c, 7)
        stamp(c, 8)
        stamp(c, 9)
        c("s_cmp_eq_u32 s51, 0")
        c("s_cbranch_scc1 L_k1_fin")
        d = seg("tB2")
        d(f"v_mul_u32_u24 v{U+5}, {7*2048}, v{U+3}")
        d(f"v_add_u32 v{U+5}, v{U+5}, v{U+4}")
        d("s_add_u32 s60, s59, 4096")
        d("s_add_u32 s67, s59, 8192")
        d("s_add_u32 s68, s59, 12288")
        d("s_mov_b32 s61, 0")
        p = seg("poll")
        p(f"L_k1_poll{hf}:")
        G = 32
        so = ["s59", "s59", "s60", "s60", "s67", "s67", "s68"]
        for i in range(7):
            p(f"buffer_load_dwordx4 {vr(G+4*i,4)}, v{U+5}, s[28:31], {so[i]} offen offset:{(i&1)*2048} sc0 sc1")
        p(f"v_xor_b32 v{G+28}, v{G+1}, v{T+9}")
        for i in range(3, 28, 2):
            p(f"v_xor_b32 v{G+29}, v{G+i}, v{T+9}")
            p(f"v_or_b32 v{G+28}, v{G+28}, v{G+29}")
        p(f"v_cmp_ne_u32 vcc, 0, v{G+28}")
        p("s_add_u32 s61, s61, 1")
        p("s_cmp_eq_u64 vcc, 0")
        p(f"s_cbranch_scc1 L_k1_polled{hf}")
        p("s_sleep 1")
        p("s_cmp_lt_u32 s61, 0x40000")
        p(f"s_cbranch_scc1 L_k1_poll{hf}")
        e = seg("tB3")
        e(f"L_k1_polled{hf}:")
        stamp(e, 8)
        for i in range(1, 7):
            e(f"v_add_f32 v{G}, v{G}, v{G+4*i}")
            e(f"v_add_f32 v{G+2}, v{G+2}, v{G+4*i+2}")
        e(f"v_mov_b32 v{G+1}, v{G}")
        e(f"v_mov_b32 v{G+3}, v{G+2}")
        e(f"v_permlane32_swap_b32 v{G}, v{G+1}")
        e(f"v_permlane32_swap_b32 v{G+2}, v{G+3}")
        e(f"v_add_f32 v{G}, v{G}, v{G+1}")
        e(f"v_add_f32 v{G+2}, v{G+2}, v{G+3}")
        e(f"v_mul_f32 v{G}, 0x3a924925, v{G}")
        e(f"v_mul_f32 v{G+2}, 0x3a924925, v{G+2}")
        e(f"v_fma_f32 v{G+2}, -v{G}, v{G}, v{G+2}")
        e(f"v_max_f32 v{G+2}, 0, v{G+2}")
        e(f"v_add_f32 v{G+2}, 0x3727c5ac, v{G+2}")
        e(f"v_rsq_f32 v{V_RSTD}, v{G+2}")
        e(f"v_mul_f32 v{V_NMU}, v{G}, v{V_RSTD}")
        e(f"v_sub_f32 v{V_NMU}, 0, v{V_NMU}")
        e(f"s_add_u32 s55, s53, {8192 + hf*4608}")
        e(f"v_mul_u32_u24 v{U+5}, 576, v{U+3}")
        e(f"v_add_u32 v{U+5}, v{U+5}, v{U+4}")
        e(f"v_add_u32 v{U+5}, s55, v{U+5}")
        e(f"v_bfe_u32 v{U+6}, v0, 4, 1")
        e(f"v_and_b32 v{U+7}, 1, v0")
        e(f"v_lshl_add_u32 v{U+6}, v{U+6}, 1, v{U+7}")
        e(f"v_mul_u32_u24 v{U+6}, 576, v{U+6}")
        e(f"v_bfe_u32 v{U+7}, v0, 2, 2")
        e(f"v_lshl_add_u32 v{U+7}, v{U+3}, 3, v{U+7}")
        e(f"v_lshl_add_u32 v{U+6}, v{U+7}, 4, v{U+6}")
        e(f"v_bfe_u32 v{U+7}, v0, 1, 1")
        e(f"v_lshl_add_u32 v{U+6}, v{U+7}, 3, v{U+6}")
        e(f"v_add_u32 v{U+6}, s55, v{U+6}")
        e("s_lshl_b32 s55, s50, 9")
        e("s_lshl_b32 s59, s52, 1")
        e("s_add_u32 s55, s55, s59")
        e("s_lshl_b32 s55, s55, 10")
        e(f"s_add_u32 s55, s55, {WS_Z2N + hf*2*128*1024}")
        for jj in range(2):
            P = 64 + jj * 8
            for i in range(16):
                z = ACCZ + 16 * jj + i
                e(f"v_fma_f32 v{z}, v{z}, v{V_RSTD}, v{V_NMU}")
            for pp in range(8):
                e(f"v_cvt_pk_bf16_f32 v{P+pp}, v{ACCZ+16*jj+2*pp}, v{ACCZ+16*jj+2*pp+1}")
            e(f"ds_write_b128 v{U+5}, {vr(P,4)} offset:{jj*2304}")
            e(f"ds_write_b128 v{U+5}, {vr(P+4,4)} offset:{jj*2304+1152}")
            O = 80 + jj * 8
            for ks2 in range(2):
                for ee in range(2):
                    e(f"ds_read_b64_tr_b16 {vr(O+ks2*4+ee*2,2)}, v{U+6} offset:{jj*2304 + (16*ks2+4*ee)*16}")
        for jj in range(2):
            O = 80 + jj * 8
            if jj:
                e(f"s_add_u32 s55, s55, {128*1024}")
            e(f"buffer_store_dwordx4 {vr(O,4)}, v{V_L16}, s[28:31], s55 offen")
            e(f"buffer_store_dwordx4 {vr(O+4,4)}, v{V_L16}, s[28:31], s55 offen offset:1024")
        stamp(e, 9)
        e("s_branch L_k1_fin")
        tailn = [R + x for x in ("tB2", "poll", "tB3")]
        head = [x for x in names if x not in tailn]
        for skip_nonce in ((False, True) if hf == 0 else (False,)):
            for repoll in (False, True):
                h = []
                for x in head:
                    if skip_nonce and x in (R + "nonce", R + "nonce2"):
                        continue
                    if x.startswith(R + "csr"):
                        if repoll:
                            cn = x.replace("csr", "csc")
                            h += [x, cn, x, cn]
                        continue
                    h.append(x)
                    if x == R + "vpoll" and repoll:
                        h.append(x)
                hB = [x for x in h if x != R + "z1st"]
                hA = [x for x in h if x != R + "pub"]
                K.trace(["pro"] + hB + [R + x for x in ("tB2", "poll", "poll", "poll", "tB3")] + ["end"])
                K.trace(["pro"] + hB + [R + x for x in ("tB2", "poll", "tB3")] + ["end"])
                K.trace(["pro"] + hA + ["end"])

    role(0)
    role(1)
    z = K.seg("end")
    z("L_k1_fin:")
    stamp_rt(z, 11)
    stamp_flush(z, 12, 28, 3, 8, 2)
    z("L_k1_end:")
    z("s_endpgm")
    pf = K.seg("pref")
    pf("L_k1_pref:")
    pf(f"s_load_dwordx2 s[4:5], s[0:1], {KA_WSP}")
    pf(f"s_load_dwordx2 s[12:13], s[0:1], {KA_WQKV}")
    pf(f"s_load_dwordx2 s[14:15], s[0:1], {KA_WIN}")
    pf(f"s_load_dwordx4 s[16:19], s[0:1], {KA_DBG}")
    pf("s_memrealtime s[30:31]")
    pf("s_mov_b32 s3, s2")
    pf("v_lshlrev_b32 v1, 4, v0")
    pf("v_lshrrev_b32 v2, 6, v0")
    pf("v_and_b32 v3, 63, v0")
    pf("v_readfirstlane_b32 s6, v2")
    pf(f"s_cmp_ge_u32 s3, {NHELP_CS}")
    pf("s_cbranch_scc1 L_k1_pref2")
    cs = K.seg("cs")
    cs("s_lshr_b32 s7, s6, 2")
    cs("s_lshl_b32 s20, s3, 1")
    cs("s_add_u32 s20, s20, s7")
    cs("s_and_b32 s21, s6, 3")
    cs("s_waitcnt lgkmcnt(0)")
    cs(f"s_mov_b32 s26, {448*3584}")
    cs("s_mov_b32 s22, 3584")
    cs("s_cmp_lt_u32 s20, 21")
    cs("s_cselect_b32 s24, s12, s14")
    cs("s_cselect_b32 s25, s13, s15")
    cs(f"s_cselect_b32 s26, {448*2688}, s26")
    cs("s_cselect_b32 s22, 2688, s22")
    cs("s_cselect_b32 s23, 0, 21")
    cs("s_and_b32 s25, s25, 0xffff")
    cs("s_mov_b32 s27, 0x20000")
    cs("s_sub_u32 s23, s20, s23")
    cs("s_lshl_b32 s23, s23, 7")
    cs("s_cmp_ge_u32 s20, 49")
    cs("s_cselect_b32 s26, 0, s26")
    cs("s_mul_i32 s28, s21, 112")
    cs("s_mul_i32 s28, s28, s22")
    cs("s_add_u32 s28, s28, s23")
    cs("s_lshl_b32 s29, s22, 3")
    cs("v_lshrrev_b32 v6, 3, v3")
    cs("v_mul_lo_u32 v6, v6, s22")
    cs("v_and_b32 v7, 7, v3")
    cs("v_lshl_add_u32 v6, v7, 4, v6")
    for i in range(14):
        cs(f"buffer_load_dwordx4 {vr(16+4*i,4)}, v6, s[24:27], s28 offen")
        cs("s_add_u32 s28, s28, s29")
    cs("v_mov_b32 v8, 0x3f80")
    cs("v_mov_b32 v9, 0x3f800000")
    for j in range(8):
        cs(f"v_mov_b32 v{80+j}, 0")
    if STAMP:
        cs("s_waitcnt vmcnt(0)")
        cs("s_memrealtime s[34:35]")
    for i in range(14):
        for r in range(4):
            cs(f"v_dot2_f32_bf16 v{80+2*r}, v{16+4*i+r}, v8, v{80+2*r}")
            cs(f"v_dot2_f32_bf16 v{81+2*r}, v{16+4*i+r}, v9, v{81+2*r}")
    cs("s_lshl_b32 s7, s6, 8")
    cs("v_lshlrev_b32 v7, 5, v7")
    cs("v_add_u32 v7, s7, v7")
    cs("s_nop 2")
    for j_ in range(8):
        cs(f"v_add_f32_dpp v{80+j_}, v{80+j_}, v{80+j_} row_ror:8 row_mask:0xf bank_mask:0xf")
    for j_ in range(8):
        cs(f"v_mov_b32 v{88+j_}, v{80+j_}")
    for j_ in range(8):
        cs(f"v_permlane16_swap_b32 v{80+j_}, v{88+j_}")
    for j_ in range(8):
        cs(f"v_add_f32 v{80+j_}, v{80+j_}, v{88+j_}")
    for j_ in range(8):
        cs(f"v_mov_b32 v{88+j_}, v{80+j_}")
    for j_ in range(8):
        cs(f"v_permlane32_swap_b32 v{80+j_}, v{88+j_}")
    for j_ in range(8):
        cs(f"v_add_f32 v{80+j_}, v{80+j_}, v{88+j_}")
    cs("s_mov_b64 exec, 0xff")
    cs("ds_write_b128 v7, v[80:83]")
    cs("ds_write_b128 v7, v[84:87] offset:16")
    cs("s_mov_b64 exec, -1")
    cs("s_waitcnt lgkmcnt(0)")
    cs("s_barrier")
    cs("s_cmp_lg_u32 s6, 0")
    cs("s_cbranch_scc1 L_k1_pref2")
    c2 = K.seg("cs2")
    srd(c2, 24, 18, 131072, WS_CS)
    if STAMP:
        c2("s_waitcnt lgkmcnt(0)")
        c2("s_mov_b32 s40, s34")
    srd(c2, 32, 16, 256)
    c2("s_or_b32 s30, s30, 1")
    c2("v_mul_u32_u24 v4, 43, v3")
    c2("v_lshrrev_b32 v4, 8, v4")
    c2("v_mad_i32_i24 v5, v4, -6, v3")
    c2("v_mul_u32_u24 v5, 3, v5")
    c2("v_lshrrev_b32 v6, 1, v4")
    c2("v_and_b32 v7, 1, v4")
    c2("v_lshlrev_b32 v6, 5, v6")
    c2("v_lshl_add_u32 v6, v7, 2, v6")
    for i_ in range(3):
        c2(f"v_add_u32 v8, {i_}, v5")
        c2("v_min_u32 v8, 15, v8")
        c2("v_and_b32 v9, 3, v8")
        c2("v_lshrrev_b32 v8, 2, v8")
        c2("v_lshl_add_u32 v8, v8, 3, v9")
        c2("v_add_u32 v8, v8, v6")
        c2("v_bfe_u32 v9, v8, 6, 1")
        c2("v_and_b32 v8, 63, v8")
        c2("v_lshlrev_b32 v8, 2, v8")
        c2("v_lshl_add_u32 v8, v9, 10, v8")
        for kq in range(4):
            c2(f"ds_read_b32 v{24+4*i_+kq}, v8 offset:{kq*256}")
    c2("v_and_b32 v4, 31, v3")
    c2("v_lshlrev_b32 v4, 3, v4")
    c2("v_lshrrev_b32 v9, 5, v3")
    c2("v_lshl_add_u32 v4, v9, 10, v4")
    for kq in range(4):
        c2(f"ds_read_b64 v[{40+2*kq}:{41+2*kq}], v4 offset:{kq*256}")
    for i_ in range(3):
        c2(f"v_add_f32 v{24+4*i_}, v{24+4*i_}, v{25+4*i_}")
        c2(f"v_add_f32 v{26+4*i_}, v{26+4*i_}, v{27+4*i_}")
        c2(f"v_add_f32 v{12+i_}, v{24+4*i_}, v{26+4*i_}")
    for i_ in range(2):
        c2(f"v_add_f32 v{40+i_}, v{40+i_}, v{42+i_}")
        c2(f"v_add_f32 v{44+i_}, v{44+i_}, v{46+i_}")
        c2(f"v_add_f32 v{16+i_}, v{40+i_}, v{44+i_}")
    c2("v_mov_b32 v15, s30")
    c2("v_lshlrev_b32 v5, 4, v3")
    c2("s_mul_i32 s7, s3, 768")
    c2("s_mov_b32 exec_hi, 0xffff")
    c2("buffer_store_dwordx4 v[12:15], v5, s[24:27], s7 offen sc0 sc1")
    c2("s_mov_b64 exec, -1")
    c2("v_mov_b32 v20, v16")
    c2("v_mov_b32 v21, s30")
    c2("v_mov_b32 v22, v17")
    c2("v_mov_b32 v23, s30")
    c2("s_lshl_b32 s7, s3, 10")
    c2("s_add_u32 s7, s7, 65536")
    c2("buffer_store_dwordx4 v[20:23], v5, s[24:27], s7 offen sc0 sc1")
    c2("s_lshl_b32 s7, s3, 2")
    c2(f"s_add_u32 s7, s7, {DBG_TAG}")
    c2("v_mov_b32 v4, 0")
    c2("s_mov_b64 exec, 1")
    c2("buffer_store_dword v15, v4, s[32:35], s7 offen sc0 sc1")
    if STAMP:
        c2("s_memrealtime s[36:37]")
        c2("s_waitcnt vmcnt(0)")
        c2("s_memrealtime s[38:39]")
        c2("s_waitcnt lgkmcnt(0)")
        srd(c2, 24, 18, 24 * MB)
        c2("s_lshl_b32 s7, s3, 6")
        c2(f"s_add_u32 s7, s7, {WS_STAMP + 224*8*64}")
        for i_, r_ in enumerate((30, 40, 36, 38)):
            c2(f"v_mov_b32 v15, s{r_}")
            c2(f"buffer_store_dword v15, v4, s[24:27], s7 offen offset:{4*i_}")
    c2("s_mov_b64 exec, -1")
    p2 = K.seg("pref2")
    p2("L_k1_pref2:")
    p2("s_lshl_b32 s3, s3, 18")
    p2("s_waitcnt lgkmcnt(0)")
    srd(p2, 8, 4, 2048 * 4096)
    p2("s_mov_b32 s6, 2")
    pl = K.seg("prefloop")
    pl("L_k1_prefloop:")
    for i in range(16):
        pl(f"buffer_load_dwordx4 {vr(16+4*i,4)}, v1, s[8:11], s3 offen")
        pl("s_add_u32 s3, s3, 8192")
    pl("s_sub_u32 s6, s6, 1")
    pl("s_cmp_lg_u32 s6, 0")
    pl("s_cbranch_scc1 L_k1_prefloop")
    pl("s_endpgm")
    K.trace(["pref", "pref2", "prefloop", "prefloop"])
    K.trace(["pref", "cs", "pref2", "prefloop", "prefloop"])
    K.trace(["pref", "cs", "cs2", "pref2", "prefloop", "prefloop"])
    return kernel_text("k1_kernel", K.emit(), vgpr=232, sgpr=100, accum=232, agpr=24)


if __name__ == "__main__":
    print(gen_k1())
```

```python
from common import *

K2_LDS = 163840
DELTA = 64.0
import struct
f2u = lambda f: struct.unpack('<I', struct.pack('<f', f))[0]


def gen_k2():
    K = Kernel("k2_kernel")
    s = K.seg("pro")
    s("s_cmp_ge_u32 s2, 256")
    s("s_cbranch_scc1 L_k2_end")
    s(f"s_load_dwordx4 s[4:7], s[0:1], {KA_WSP}")
    s(f"s_load_dwordx2 s[8:9], s[0:1], {KA_WS}")
    stamp(s, 0)
    stamp_rt(s, 4)
    s("v_lshrrev_b32 v1, 6, v0")
    s("v_and_b32 v0, 63, v0")
    s("v_readfirstlane_b32 s3, v1")
    s("v_lshlrev_b32 v1, 4, v0")
    s("s_and_b32 s10, s2, 7")
    s("s_lshr_b32 s11, s2, 3")
    s("s_waitcnt lgkmcnt(0)")
    srd(s, 28, 8, 24 * MB)
    s("s_cmp_ge_u32 s3, 4")
    s("s_cbranch_scc1 L_k2_gemm")

    a = K.seg("a_pro")
    S = [16, 32]
    P, Q, C, T = 48, 56, 88, 92
    a("s_setprio 2")
    if os.environ.get("K2_NOATT"):
        a("s_branch L_k2_end")
    a("s_lshr_b32 s12, s11, 4")
    a("s_lshl_b32 s13, s10, 1")
    a("s_add_u32 s12, s12, s13")
    a("s_and_b32 s13, s11, 15")
    a("s_lshl_b32 s14, s12, 18")
    a("s_lshl_b32 s15, s3, 16")
    a("s_add_u32 s14, s14, s15")
    a(f"s_add_u32 s14, s14, {WS_KV}")
    a("s_add_u32 s32, s8, s14")
    a("s_addc_u32 s33, s9, 0")
    a("s_and_b32 s33, s33, 0xffff")
    a("s_mov_b32 s34, 65536")
    a("s_mov_b32 s35, 0x20000")

    def kvload(seg, buf, soff, imm_kt=0):
        for f in range(4):
            seg(f"buffer_load_dwordx4 {ar(64+buf*16+f*4,4)}, v1, s[32:35], {soff} offen offset:{f*1024}")

    kvload(a, 0, "0")
    a("s_lshl_b32 s14, s12, 17")
    a("s_lshl_b32 s15, s13, 13")
    a("s_add_u32 s14, s14, s15")
    for j in range(4):
        a(f"s_add_u32 s15, s3, {j}")
        a("s_and_b32 s15, s15, 3")
        a("s_lshl_b32 s15, s15, 11")
        a("s_add_u32 s15, s15, s14")
        a(f"buffer_load_dwordx4 {vr(Q+8*j,4)}, v1, s[28:31], s15 offen")
        a(f"buffer_load_dwordx4 {vr(Q+8*j+4,4)}, v1, s[28:31], s15 offen offset:1024")
    a("s_mov_b32 s16, 4096")
    a("s_mov_b32 s17, 8192")
    kvload(a, 1, "s16")
    kvload(a, 2, "s17")
    a("s_mov_b32 s18, 0")
    a("s_mov_b32 exec_lo, 0")
    for j in range(4):
        a(f"v_mov_b32 v{Q+8*j+6}, 0")
        a(f"v_mov_b32 v{Q+8*j+7}, 0")
    a("s_mov_b32 exec_lo, -1")

    def qk(dst, buf, j, half):
        c = "0" if half == 0 else vr(dst, 16)
        return mk(f"v_mfma_f32_32x32x16_bf16 {vr(dst,16)}, {ar(64+buf*16+half*4,4)}, {vr(Q+8*j+half*4,4)}, {c}")

    def tilemax(seg, src, dst, first):
        if first:
            seg(f"v_max3_f32 v{dst}, v{src}, v{src+1}, v{src+2}")
            seg(f"v_max_f32 v{dst}, v{dst}, v{src+3}")
        else:
            seg(f"v_max3_f32 v{dst}, v{dst}, v{src}, v{src+1}")
            seg(f"v_max3_f32 v{dst}, v{dst}, v{src+2}, v{src+3}")
        for i in range(4, 16, 2):
            seg(f"v_max3_f32 v{dst}, v{dst}, v{src+i}, v{src+i+1}")

    def setpads(seg, delta):
        for j in range(4):
            seg(f"v_mov_b32 v{T+j}, v{C+j}")
        for j in range(4):
            seg(f"v_permlane32_swap_b32 v{C+j}, v{T+j}")
        for j in range(4):
            seg(f"v_max_f32 v{C+j}, v{C+j}, v{T+j}")
            if delta:
                seg(f"v_add_f32 v{C+j}, {hex(f2u(delta))}, v{C+j}")
        for j in range(4):
            h, m, l, r = T + 4, T + 5, T + 6, T + 7
            seg(f"v_sub_f32 v{r}, 0, v{C+j}")
            seg(f"v_and_b32 v{h}, 0xffff0000, v{r}")
            seg(f"v_sub_f32 v{r}, v{r}, v{h}")
            seg(f"v_and_b32 v{m}, 0xffff0000, v{r}")
            seg(f"v_sub_f32 v{r}, v{r}, v{m}")
            seg(f"v_and_b32 v{l}, 0xffff0000, v{r}")
            seg(f"v_add_f32 v{r}, v{h}, v{m}")
            seg(f"v_add_f32 v{r}, v{r}, v{l}")
            seg(f"v_sub_f32 v{C+j}, 0, v{r}")
            seg("s_mov_b32 exec_lo, 0")
            seg(f"v_lshrrev_b32 v{h}, 16, v{h}")
            seg(f"v_or_b32 v{Q+8*j+6}, v{h}, v{m}")
            seg(f"v_lshrrev_b32 v{Q+8*j+7}, 16, v{l}")
            seg("s_mov_b32 exec_lo, -1")

    for j in range(4):
        d = S[j & 1]
        a.add(qk(d, 0, j, 0))
        a.add(qk(d, 0, j, 1))
        if j > 0:
            tilemax(a, S[(j - 1) & 1], C + j - 1, True)
    tilemax(a, S[1], C + 3, True)
    setpads(a, DELTA)
    m = K.seg("a_main")
    m("L_k2_amain:")
    stamp(m, 1)
    for r in range(4, 8):
        m(f"v_mov_b32 v{P+r}, 0")
        m(f"v_accvgpr_write_b32 a{120+r}, 0")
    for r in range(4):
        m(f"v_mfma_f32_32x32x16_bf16 {ar(16*r,16)}, {vr(P+4,4)}, {vr(P+4,4)}, 0")
    m.add(qk(S[0], 0, 0, 0))
    m.add(qk(S[0], 0, 0, 1))
    m("s_mov_b32 s16, 12288")
    m("s_mov_b32 s19, 4")
    lp = K.seg("a_loop")
    lp("L_k2_aloop:")

    def pv(j, buf, half):
        o = ar(16 * j, 16)
        return mk(f"v_mfma_f32_32x32x16_bf16 {o}, {ar(64+buf*16+8+half*4,4)}, {vr(P+half*4,4)}, {o}")

    for u in range(16):
        kt, j = divmod(u, 4)
        cur, nxt = S[u & 1], S[(u + 1) & 1]
        kn, jn = divmod((u + 1) & 15, 4)
        kp, jp = divmod((u - 1) & 15, 4)
        ms = [qk(nxt, kn, jn, 0), pv(jp, kp, 1), qk(nxt, kn, jn, 1), pv(j, kt, 0)]
        for g in range(4):
            lp.add(ms[g])
            for i in range(4):
                lp(f"v_exp_f32 v{cur+4*g+i}, v{cur+4*g+i}")
            lp(f"v_cvt_pk_bf16_f32 v{P+2*g}, v{cur+4*g}, v{cur+4*g+1}")
            lp(f"v_cvt_pk_bf16_f32 v{P+2*g+1}, v{cur+4*g+2}, v{cur+4*g+3}")
        if j == 1:
            kvload(lp, (kt + 3) & 3, "s16")
            lp("s_add_u32 s16, s16, 4096")
    lp("s_sub_u32 s19, s19, 1")
    lp("s_cmp_lg_u32 s19, 0")
    lp("s_cbranch_scc1 L_k2_aloop")
    t = K.seg("a_post")
    t.add(pv(3, 3, 1))
    stamp(t, 2)
    L = T + 8
    for j in range(4):
        t(f"v_accvgpr_read_b32 v{L+j}, a{16*j+12}")
    for j in range(4):
        t(f"v_mov_b32 v{T+j}, v{L+j}")
    for j in range(4):
        t(f"v_permlane32_swap_b32 v{T+j}, v{L+j}")
    t(f"v_max3_f32 v{T}, v{L}, v{L+1}, v{L+2}")
    t(f"v_max_f32 v{T}, v{T}, v{L+3}")
    t(f"v_add_f32 v{T+1}, v{L}, v{L+1}")
    t(f"v_add_f32 v{T+2}, v{L+2}, v{L+3}")
    t(f"v_add_f32 v{T+1}, v{T+1}, v{T+2}")
    t(f"v_mov_b32 v{T+2}, {hex(f2u(2.0**90))}")
    t(f"v_cmp_nlt_f32 vcc, v{T+1}, v{T+2}")
    t("s_cmp_eq_u64 vcc, 0")
    t("s_cbranch_scc1 L_k2_aok")
    t("s_cmp_lg_u32 s18, 0")
    t("s_cbranch_scc1 L_k2_aok")
    fb = K.seg("a_fb")
    fb("s_mov_b32 s18, 1")
    fb("s_waitcnt vmcnt(0)")
    fb("s_mov_b32 exec_lo, 0")
    for j in range(4):
        fb(f"v_mov_b32 v{Q+8*j+6}, 0")
        fb(f"v_mov_b32 v{Q+8*j+7}, 0")
    fb("s_mov_b32 exec_lo, -1")
    for j in range(4):
        fb(f"v_mov_b32 v{C+j}, 0xff800000")
    fb("s_mov_b32 s16, 0")
    fl = K.seg("a_fbloop")
    fl("L_k2_fbloop:")
    kvload(fl, 3, "s16")
    for j in range(4):
        fl.add(qk(S[0], 3, j, 0))
        fl.add(qk(S[0], 3, j, 1))
        tilemax(fl, S[0], C + j, False)
    fl("s_add_u32 s16, s16, 4096")
    fl("s_cmp_lt_u32 s16, 65536")
    fl("s_cbranch_scc1 L_k2_fbloop")
    f2 = K.seg("a_fb2")
    setpads(f2, 0.0)
    f2("s_mov_b32 s16, 4096")
    f2("s_mov_b32 s17, 8192")
    kvload(f2, 0, "0")
    kvload(f2, 1, "s16")
    kvload(f2, 2, "s17")
    f2("s_branch L_k2_amain")
    c = K.seg("a_comb")
    c("L_k2_aok:")
    E = T + 12
    for j in range(4):
        c(f"v_log_f32 v{E+j}, v{L+j}")
        c(f"v_rcp_f32 v{L+j}, v{L+j}")
    for j in range(4):
        c(f"v_add_f32 v{E+j}, v{E+j}, v{C+j}")
    dsts = [16, 32, 56, 72]
    for j in range(4):
        for r in range(16):
            c(f"v_accvgpr_read_b32 v{dsts[j]+r}, a{16*j+r}")
        for r in range(16):
            c(f"v_mul_f32 v{dsts[j]+r}, v{dsts[j]+r}, v{L+j}")
    c("s_lshl_b32 s14, s3, 15")
    c("s_lshl_b32 s15, s3, 13")
    c(f"s_add_u32 s15, s15, 131072")
    c(f"v_add_u32 v2, s14, v1")
    c(f"v_add_u32 v3, s15, v1")
    c("v_lshlrev_b32 v4, 2, v0")
    c(f"v_add_u32 v4, s15, v4")
    c("s_barrier")
    for j in (1, 2):
        for g in range(4):
            c(f"ds_write_b128 v2, {vr(dsts[j]+4*g,4)} offset:{24576+(j-1)*4096+g*1024}")
    for g in range(4):
        c(f"ds_write_b128 v3, {vr(dsts[3]+4*g,4)} offset:{g*1024}")
    for j in range(1, 4):
        c(f"ds_write_b32 v4, v{E+j} offset:{4096+j*256}")
    c("s_waitcnt lgkmcnt(0)")
    c("s_barrier")
    rd = [None, 32, 56, 72]
    for j in range(1, 4):
        c(f"s_sub_u32 s14, s3, {j}")
        c("s_and_b32 s14, s14, 3")
        c("s_lshl_b32 s15, s14, 13")
        c("s_add_u32 s15, s15, 131072")
        c("s_lshl_b32 s14, s14, 15")
        if j < 3:
            c("v_add_u32 v2, s14, v1")
            for g in range(4):
                c(f"ds_read_b128 {vr(rd[j]+4*g,4)}, v2 offset:{24576+(j-1)*4096+g*1024}")
        else:
            c("v_add_u32 v2, s15, v1")
            for g in range(4):
                c(f"ds_read_b128 {vr(rd[j]+4*g,4)}, v2 offset:{g*1024}")
        c("v_lshlrev_b32 v4, 2, v0")
        c("v_add_u32 v4, s15, v4")
        c(f"ds_read_b32 v{E+j}, v4 offset:{4096+j*256}")
    c(f"v_max3_f32 v{T}, v{E}, v{E+1}, v{E+2}")
    c(f"v_max_f32 v{T}, v{T}, v{E+3}")
    for j in range(4):
        c(f"v_sub_f32 v{E+j}, v{E+j}, v{T}")
    for j in range(4):
        c(f"v_exp_f32 v{E+j}, v{E+j}")
    c(f"v_add_f32 v{T}, v{E}, v{E+1}")
    c(f"v_add_f32 v{T+1}, v{E+2}, v{E+3}")
    c(f"v_add_f32 v{T}, v{T}, v{T+1}")
    c(f"v_rcp_f32 v{T}, v{T}")
    for j in range(4):
        c(f"v_mul_f32 v{E+j}, v{E+j}, v{T}")
    for r in range(16):
        c(f"v_mul_f32 v{16+r}, v{16+r}, v{E}")
    for j in range(1, 4):
        for r in range(16):
            c(f"v_fmac_f32 v{16+r}, v{rd[j]+r}, v{E+j}")
    for p in range(8):
        c(f"v_cvt_pk_bf16_f32 v{P+p}, v{16+2*p}, v{16+2*p+1}")
    c("s_mov_b32 exec_lo, 0")
    c(f"v_mov_b32 v{P+6}, 0")
    c(f"v_mov_b32 v{P+7}, 0")
    c("s_mov_b32 exec_lo, -1")
    c("s_lshl_b32 s14, s13, 2")
    c("s_add_u32 s14, s14, s3")
    c("s_mul_i32 s14, s14, 88")
    c("s_lshl_b32 s15, s12, 1")
    c("s_add_u32 s14, s14, s15")
    c("s_lshl_b32 s14, s14, 10")
    c(f"s_add_u32 s14, s14, {WS_ACT}")
    c(f"buffer_store_dwordx4 {vr(P,4)}, v1, s[28:31], s14 offen")
    c(f"buffer_store_dwordx4 {vr(P+4,4)}, v1, s[28:31], s14 offen offset:1024")
    stamp(c, 3)
    c("s_branch L_k2_fin")

    g = K.seg("g_pro")
    g("L_k2_gemm:")
    g("s_cmp_ge_u32 s11, %d" % (0 if os.environ.get("K2_NOGEMM") else 28))
    g("s_cbranch_scc1 L_k2_pref")
    g("s_setprio 3")
    g("s_sub_u32 s3, s3, 4")
    g("s_lshr_b32 s12, s10, 1")
    g("s_lshl_b32 s12, s12, 2")
    g("s_and_b32 s13, s11, 3")
    g("s_add_u32 s12, s12, s13")
    g("s_and_b32 s13, s10, 1")
    g("s_mul_i32 s13, s13, 7")
    g("s_lshr_b32 s14, s11, 2")
    g("s_add_u32 s13, s13, s14")
    g("s_lshl_b32 s14, s12, 19")
    g("s_lshl_b32 s15, s3, 10")
    g("s_add_u32 s14, s14, s15")
    g("s_add_u32 s20, s4, s14")
    g("s_addc_u32 s21, s5, 0")
    g("s_and_b32 s21, s21, 0xffff")
    g(f"s_sub_u32 s22, {2048*4096}, s14")
    g("s_mov_b32 s23, 0x20000")
    g("s_lshl_b32 s14, s3, 2")
    for i in range(16):
        g(f"s_add_u32 s15, s14, {i}")
        g("s_and_b32 s15, s15, 15")
        g(f"s_lshl_b32 s{36+i}, s15, 15")
    g("s_lshl_b32 s52, s3, 15")
    g("v_lshrrev_b32 v4, 3, v0")
    g("v_lshlrev_b32 v4, 12, v4")
    g("v_lshrrev_b32 v5, 4, v0")
    g("v_sub_u32 v2, v0, v5")
    g("v_and_b32 v2, 7, v2")
    g("v_xor_b32 v3, 4, v2")
    g("v_lshl_add_u32 v2, v2, 4, v4")
    g("v_lshl_add_u32 v3, v3, 4, v4")
    g("v_add_u32 v8, 128, v2")
    g("v_add_u32 v9, 128, v3")
    g("v_and_b32 v10, 31, v0")
    g("v_lshrrev_b32 v11, 1, v10")
    g("v_lshrrev_b32 v12, 5, v0")
    g("v_add_u32 v11, v11, v12")
    g("v_lshlrev_b32 v10, 7, v10")
    g("v_add_u32 v10, s52, v10")
    for q in range(4):
        g(f"v_add_u32 v12, {2*q}, v11")
        g("v_and_b32 v12, 7, v12")
        g(f"v_lshl_add_u32 v{4+q}, v12, 4, v10")
    g("s_lshl_b32 s53, s13, 18")
    g("s_lshl_b32 s14, s3, 15")
    g("s_add_u32 s53, s53, s14")
    g(f"s_add_u32 s53, s53, {WS_Z2N}")
    g(f"s_add_u32 s54, s53, {128*1024}")
    Z, W = 16, 80

    def dma_block(seg, par, j, odd):
        for ii in range(4):
            i = 4 * j + ii
            vo = (8 if odd else 2) + (i & 1)
            seg(f"s_add_u32 m0, s52, {(par*4+j)*4096 + ii*1024}")
            seg(f"buffer_load_dwordx4 v{vo}, s[20:23], s{36+i} offen lds", tag="wsp")

    def zload(seg, buf, ft, extra):
        for q in range(4):
            seg(f"buffer_load_dwordx4 {vr(Z+buf*32+ft*16+q*4,4)}, v1, s[28:31], s{53+ft} offen offset:{q*1024}")

    state = dict(bs=0, issued=[])

    def group(seg, X):
        rel = (X >> 2) - state["bs"]
        if rel >= 2:
            seg("s_add_u32 s20, s20, 256")
            seg("s_addc_u32 s21, s21, 0")
            seg("s_sub_u32 s22, s22, 256")
            state["bs"] += 2
            rel -= 2
        assert rel in (0, 1)
        dma_block(seg, (X >> 2) & 1, X & 3, rel == 1)
        state["issued"].append(X)

    def wread(seg, par, j, wb):
        for q in range(4):
            seg(f"ds_read_b128 {vr(W+wb*16+q*4,4)}, v{4+q} offset:{(par*4+j)*4096}")

    def keep_for(X):
        return 4 * len([y for y in state["issued"] if y > X])

    group(g, 0)
    zload(g, 0, 0, 0)
    zload(g, 0, 1, 0)
    g("s_add_u32 s53, s53, 4096")
    g("s_add_u32 s54, s54, 4096")
    group(g, 1)
    group(g, 2)
    for r in range(4):
        g(f"v_mov_b32 v{112+r}, 0")
    for r in range(8):
        g(f"v_mfma_f32_32x32x16_bf16 {ar(16*r,16)}, v[112:115], v[112:115], 0")
    g.wait_tag("wsp", keep=keep_for(0))
    wread(g, 0, 0, 0)
    g("s_setprio 0")
    g("s_mov_b32 s19, 2")
    stamp(g, 1)

    def step(seg, B, groups, zl, nxt_keep, extra=None):
        b = B & 7
        par, j = b >> 2, b & 3
        wb = b & 1
        if nxt_keep is not None:
            pass
        for X in groups:
            group(seg, X)
        if zl:
            zload(seg, par ^ 1, j, 0)
            seg(f"s_add_u32 s{53+j}, s{53+j}, 4096")
        if extra:
            extra(seg)
        if nxt_keep is not False:
            nb = (b + 1) & 7
            seg.wait_tag("wsp", keep=keep_for(B + 1))
            wread(seg, nb >> 2, nb & 3, wb ^ 1)
        for q in range(4):
            for ft in range(2):
                acc = ar((j * 2 + ft) * 16, 16)
                seg(f"v_mfma_f32_32x32x16_bf16 {acc}, {vr(Z+par*32+ft*16+q*4,4)}, {vr(W+wb*16+q*4,4)}, {acc}")

    ramp = {0: [3, 4], 1: [5, 6], 2: [7, 8], 3: [9, 10]}
    for B in range(8):
        step(g, B, ramp.get(B, [B + 7]), (B & 3) < 2, True)
    gl = K.seg("g_loop")
    gl("L_k2_gloop:")
    bs0 = state["bs"]
    for B in range(8, 16):
        step(gl, B, [B + 7], (B & 3) < 2, True)
    assert state["bs"] == bs0 + 2
    gl("s_sub_u32 s19, s19, 1")
    gl("s_cmp_lg_u32 s19, 0")
    gl("s_cbranch_scc1 L_k2_gloop")
    state["bs"] += 2
    state["issued"] = [x + 8 for x in state["issued"]]
    ge = K.seg("g_post")
    Z1R = 112

    def z1load(ge):
        ge("s_lshl_b32 s14, s12, 2")
        ge("s_add_u32 s14, s14, s3")
        ge("s_mul_i32 s15, s14, 56")
        ge("s_lshl_b32 s16, s13, 2")
        ge("s_add_u32 s15, s15, s16")
        ge("s_lshl_b32 s15, s15, 10")
        ge(f"s_add_u32 s15, s15, {WS_Z1}")
        for q in range(4):
            ge(f"buffer_load_dwordx4 {vr(Z1R+4*q,4)}, v1, s[28:31], s15 offen offset:{q*1024}")
        srd(ge, 24, 6, 4096)
        ge("v_and_b32 v10, 31, v0")
        ge("v_lshlrev_b32 v10, 1, v10")
        ge("s_lshl_b32 s17, s14, 6")
        ge("buffer_load_ushort v11, v10, s[24:27], s17 offen")

    for B in range(24, 32):
        step(ge, B, [B + 7] if B + 7 < 32 else [], (B & 3) < 2 and B < 28, B + 1 < 32, extra=z1load if B == 27 else None)
    ge("s_setprio 3")
    stamp(ge, 2)
    ge("v_add_u32 v2, s52, v1")
    for qq in range(6):
        for gg in range(4):
            ge(f"ds_write_b128 v2, {ar(32+qq*16+gg*4,4)} offset:{qq*4096+gg*1024}")
    ge("s_waitcnt lgkmcnt(0)")
    ge("s_barrier")
    for j in range(1, 4):
        ge(f"s_sub_u32 s17, s3, {j}")
        ge("s_and_b32 s17, s17, 3")
        ge("s_lshl_b32 s17, s17, 15")
        ge("v_add_u32 v2, s17, v1")
        for gg in range(8):
            ge(f"ds_read_b128 {vr(16+(j-1)*32+gg*4,4)}, v2 offset:{(j-1)*8192+gg*1024}")
    ge("s_barrier")
    ge("v_lshlrev_b32 v11, 16, v11")
    for r in range(32):
        ge(f"v_accvgpr_read_b32 v2, a{r}") if False else None
    for r in range(32):
        t0 = 2 + (r & 3)
        ge(f"v_accvgpr_read_b32 v{t0}, a{r}")
        ge(f"v_add_f32 v{16+r}, v{16+r}, v{48+r}")
        ge(f"v_add_f32 v{t0}, v{t0}, v11")
        ge(f"v_add_f32 v{16+r}, v{16+r}, v{80+r}")
        ge(f"v_add_f32 v{16+r}, v{16+r}, v{t0}")
    for p in range(16):
        t0 = 2 + 2 * (p & 1)
        ge(f"v_lshlrev_b32 v{t0}, 16, v{Z1R+p}")
        ge(f"v_and_b32 v{t0+1}, 0xffff0000, v{Z1R+p}")
        ge(f"v_mul_f32 v{16+2*p}, v{16+2*p}, v{t0}")
        ge(f"v_mul_f32 v{17+2*p}, v{17+2*p}, v{t0+1}")
        ge(f"v_cvt_pk_bf16_f32 v{48+p}, v{16+2*p}, v{17+2*p}")
    ge("s_mul_i32 s15, s14, 88")
    ge("s_add_u32 s15, s15, s16")
    ge("s_add_u32 s15, s15, 32")
    ge("s_lshl_b32 s15, s15, 10")
    ge(f"s_add_u32 s15, s15, {WS_ACT}")
    for q in range(4):
        ge(f"buffer_store_dwordx4 {vr(48+4*q,4)}, v1, s[28:31], s15 offen offset:{q*1024}")
    stamp(ge, 3)
    ge("s_add_u32 s3, s3, 4")
    z = K.seg("end")
    z("L_k2_fin:")
    stamp_rt(z, 5)
    stamp_flush(z, 6, 28, 3, 8, 2)
    z("L_k2_end:")
    z("s_endpgm")
    pf = K.seg("pref")
    pf("L_k2_pref:")
    pf(f"s_load_dwordx2 s[12:13], s[0:1], {KA_WO}")
    pf(f"s_load_dwordx2 s[14:15], s[0:1], {KA_WOUT}")
    pf("s_sub_u32 s16, s11, 28")
    pf("s_lshl_b32 s16, s16, 3")
    pf("s_add_u32 s16, s16, s10")
    pf("s_lshl_b32 s16, s16, 2")
    pf("s_sub_u32 s17, s3, 4")
    pf("s_add_u32 s16, s16, s17")
    pf("s_mul_i32 s17, s16, 4096")
    pf("s_mul_i32 s18, s16, 7168")
    pf("s_add_u32 s19, s18, 4096")
    pf("s_waitcnt lgkmcnt(0)")
    srd(pf, 20, 12, 448 * 896)
    srd(pf, 24, 14, 896 * 896)
    for i in range(4):
        pf(f"buffer_load_dwordx4 {vr(4+4*i,4)}, v1, s[20:23], s17 offen offset:{i*1024}")
    for i in range(4):
        pf(f"buffer_load_dwordx4 {vr(20+4*i,4)}, v1, s[24:27], s18 offen offset:{i*1024}")
    for i in range(3):
        pf(f"buffer_load_dwordx4 {vr(36+4*i,4)}, v1, s[24:27], s19 offen offset:{i*1024}")
    pf("s_endpgm")
    K.trace(["pro", "pref"])
    A0 = ["pro", "a_pro", "a_main", "a_loop", "a_loop", "a_loop", "a_post"]
    K.trace(A0 + ["a_comb", "end"])
    K.trace(A0 + ["a_fb", "a_fbloop", "a_fbloop", "a_fb2", "a_main", "a_loop", "a_loop", "a_post", "a_comb", "end"])
    K.trace(["pro", "g_pro", "g_loop", "g_loop", "g_post", "end"])
    return kernel_text("k2_kernel", K.emit(), vgpr=128, sgpr=100, accum=128, agpr=128)


if __name__ == "__main__":
    print(gen_k2())
```
